```python
import torch

def _softmax(x, axis=-1):
    return torch.softmax(x, dim=axis)
def _gelu(x):
    return torch.nn.functional.gelu(x, approximate="tanh")
def _silu(x):
    return torch.nn.functional.silu(x)
def _sigmoid(x):
    return torch.sigmoid(x)
def _layernorm(x, axis=-1, eps=1e-5):
    m = x.mean(dim=axis, keepdim=True)
    v = x.var(dim=axis, keepdim=True, unbiased=False)
    return (x - m) / torch.sqrt(v + eps)
def _scatter_add(tgt, idx, src, axis=0):
    return tgt.clone().index_add_(axis, idx, src)
def _segment_sum(src, seg, n):
    out = torch.zeros((n,) + src.shape[1:], dtype=src.dtype)
    return out.index_add_(0, seg, src)
def _pad(x, pw):
    flat = tuple(v for pair in reversed(pw) for v in pair)
    return torch.nn.functional.pad(x, flat)

kernel_name = 'interleave_layers__ssm_conv_h3__glu_gated_swiglu__prompt'

def setup_inputs():

    _w = (lambda a: (lambda t: t.to(torch.bfloat16) if t.is_floating_point() else t)(torch.as_tensor(a)))
    def _A_setup():
        B, S, D = 1, 2048, 576
        ks = 4
        return {
            "q": _w((lambda *s: torch.randn(*s, dtype=torch.bfloat16) * 0.05)(B, S, D)),
            "k": _w((lambda *s: torch.randn(*s, dtype=torch.bfloat16) * 0.2)(B, S, D)),
            "v": _w((lambda *s: torch.randn(*s, dtype=torch.bfloat16) * 0.2)(B, S, D)),
            "shift_k": _w((lambda *s: torch.randn(*s, dtype=torch.bfloat16) * 0.2)(D, ks) * 0.5),
            "ssm_k": _w((lambda *s: torch.randn(*s, dtype=torch.bfloat16) * 0.4)(D, S) * (1.0 / S ** 0.5)),
            "ssm_D": _w((lambda *s: torch.randn(*s, dtype=torch.bfloat16) * 0.2)(D)),
        }
    _A_in = _A_setup()

    def _B_setup():
        B, S, D, F = 1, 2048, 576, 4608
        return {
            "x": _w((lambda *s: torch.randn(*s, dtype=torch.bfloat16) * 0.05)(B, S, D)),
            "w1": _w((lambda *s: torch.randn(*s, dtype=torch.bfloat16) * 0.2)(D, F) * (2.0 / D) ** 0.5),
            "w3": _w((lambda *s: torch.randn(*s, dtype=torch.bfloat16) * 0.2)(D, F) * (2.0 / D) ** 0.5),
            "w2": _w((lambda *s: torch.randn(*s, dtype=torch.bfloat16) * 0.2)(F, D) * (2.0 / F) ** 0.5),
        }
    _B_in = _B_setup()

    return {
        "A_q": _A_in["q"],
        "A_k": _A_in["k"],
        "A_v": _A_in["v"],
        "A_shift_k": _A_in["shift_k"],
        "A_ssm_k": _A_in["ssm_k"],
        "A_ssm_D": _A_in["ssm_D"],
        "B_x": _B_in["x"],
        "B_w1": _B_in["w1"],
        "B_w3": _B_in["w3"],
        "B_w2": _B_in["w2"],
    }

def reference(A_q, A_k, A_v, A_shift_k, A_ssm_k, A_ssm_D, B_x, B_w1, B_w3, B_w2):
    def _A_ref(q, k, v, shift_k, ssm_k, ssm_D):
        B, S, D = q.shape
        ks = shift_k.shape[-1]
        k_pad = _pad(k, ((0, 0), (ks - 1, 0), (0, 0)))
        k_shift = torch.zeros_like(k)
        for t in range(ks):
            k_shift = k_shift + k_pad[:, t:t + S, :] * shift_k[:, ks - 1 - t][None, None, :]
        kv = k_shift * v
        L = 2 * S
        kv_pad = _pad(kv, ((0, 0), (0, S), (0, 0)))
        kf_pad = _pad(ssm_k, ((0, 0), (0, S)))
        kv_f = (lambda x, axes=(-2,-1): torch.fft.rfft2(x.float(), dim=axes))(kv_pad[:, None, :, :], axes=(1, 2))
        kf_f = (lambda x, axes=(-2,-1): torch.fft.rfft2(x.float(), dim=axes))(kf_pad[:, None, :], axes=(1, 2))
        kf_f = (lambda x, *d: x.permute(*d))(kf_f, 1, 2, 0)
        y_f = kv_f * kf_f[None, :, :, :]
        y = (lambda x, s, axes=(-2,-1): torch.fft.irfft2(x, s=s, dim=axes).to(torch.bfloat16))(y_f, (1, L), axes=(1, 2))[:, 0, :S, :]
        y = y + kv * ssm_D[None, None, :]
        return q * y

    def _B_ref(x, w1, w3, w2):
        gate = torch.einsum("bsd,df->bsf", x, w1)
        up = torch.einsum("bsd,df->bsf", x, w3)
        h = _silu(gate) * up
        out = torch.einsum("bsf,fd->bsd", h, w2)
        return out

    x = A_q
    x = x + _A_ref(_layernorm(x, axis=-1), A_k, A_v, A_shift_k, A_ssm_k, A_ssm_D)
    x = x + _B_ref(_layernorm(x, axis=-1), B_w1, B_w3, B_w2)
    x = x + _A_ref(_layernorm(x, axis=-1), A_k, A_v, A_shift_k, A_ssm_k, A_ssm_D)
    x = x + _B_ref(_layernorm(x, axis=-1), B_w1, B_w3, B_w2)
    return x
```

```python
import sys

NAME = "interleave_layers__ssm_conv_h3__glu_gated_swiglu__prompt"
S, D, F = 2048, 576, 4608
KA_Q, KA_K, KA_V, KA_SH, KA_SK, KA_SD, KA_BX, KA_W1, KA_W3, KA_W2, KA_OUT, KA_DBG, KA_WS = [8 * i for i in range(13)]
WS_Y = 0
WS_X1 = 0x400000
WS_XN = 0x800000
WS_X3 = 0xC00000
WS_H = 0x1000000
WS_P = 0x3000000
ROWB = D * 2
NSPLIT = 4

HEADER = open(f"cdna_kernels/{NAME}.s.ref").read().split("; @launch")[0]


class K:
    def __init__(self):
        self.lines = []
        self.lbl = 0

    def __call__(self, s):
        for l in s.strip("\n").split("\n"):
            self.lines.append("    " + l.strip())

    def raw(self, s):
        self.lines.append(s)

    def label(self, name):
        self.lines.append(name + ":")

    def newlabel(self, p="L"):
        self.lbl += 1
        return f"{p}_{self.lbl}"

    def text(self):
        return "\n".join(self.lines) + "\n"


def srd(k, d, ptr_lo, nbytes, off=0):
    if off:
        k(f"s_add_u32 s{d}, s{ptr_lo}, {off}")
        k(f"s_addc_u32 s{d+1}, s{ptr_lo+1}, 0")
    else:
        k(f"s_mov_b32 s{d}, s{ptr_lo}")
        k(f"s_mov_b32 s{d+1}, s{ptr_lo+1}")
    k(f"s_mov_b32 s{d+2}, {nbytes}")
    k(f"s_mov_b32 s{d+3}, 0x00020000")


def kernel_begin(k, name):
    k.raw(f".globl {name}")
    k.raw(".p2align 8")
    k.raw(f".type {name},@function")
    k.label(name)


def kd(name, vgpr, sgpr=102, accum=None):
    if accum is None:
        accum = (vgpr + 3) // 4 * 4
    return f""".p2align 6
.amdhsa_kernel {name}
  .amdhsa_next_free_vgpr {vgpr}
  .amdhsa_next_free_sgpr {sgpr}
  .amdhsa_accum_offset {accum}
  .amdhsa_group_segment_fixed_size 0
  .amdhsa_kernarg_size 104
  .amdhsa_user_sgpr_count 2
  .amdhsa_user_sgpr_kernarg_segment_ptr 1
  .amdhsa_system_sgpr_workgroup_id_x 1
.end_amdhsa_kernel
"""


U_STRIDE = 5120
HC_BASE = 8 * U_STRIDE
HC_COPY = 4224
YS_BASE = HC_BASE + 16 * HC_COPY
CONV_LDS = YS_BASE + 8192


def gen_conv(k):
    name = "conv_kernel"
    kernel_begin(k, name)
    done = "conv_done"
    k(f"""
    s_cmp_ge_u32 s2, 288
    s_cbranch_scc1 {done}
    s_load_dwordx4 s[4:7], s[0:1], {KA_K}
    s_load_dwordx4 s[8:11], s[0:1], {KA_SH}
    s_load_dwordx2 s[12:13], s[0:1], {KA_SD}
    s_load_dwordx2 s[14:15], s[0:1], {KA_WS}
    s_lshr_b32 s20, s2, 2                      ; cg
    s_and_b32 s21, s2, 3                       ; q
    s_waitcnt lgkmcnt(0)
    s_lshl_b32 s3, s20, 6
    s_add_u32 s8, s8, s3
    s_addc_u32 s9, s9, 0
    s_load_dwordx16 s[72:87], s[8:9], 0
    s_lshl_b32 s3, s20, 4
    s_add_u32 s12, s12, s3
    s_addc_u32 s13, s13, 0
    s_load_dwordx4 s[88:91], s[12:13], 0
    """)
    srd(k, 24, 4, S * ROWB)
    srd(k, 28, 6, S * ROWB)
    srd(k, 92, 10, D * S * 2)
    srd(k, 96, 14, S * ROWB, WS_Y)
    k("s_waitcnt lgkmcnt(0)")
    for ch in range(8):
        for t in range(4):
            src = 72 + ch * 2 + t // 2
            dst = 32 + ch * 4 + t
            if t % 2 == 0:
                k(f"s_lshl_b32 s{dst}, s{src}, 16")
            else:
                k(f"s_and_b32 s{dst}, s{src}, 0xffff0000")
    for ch in range(8):
        src = 88 + ch // 2
        if ch % 2 == 0:
            k(f"s_lshl_b32 s{64+ch}, s{src}, 16")
        else:
            k(f"s_and_b32 s{64+ch}, s{src}, 0xffff0000")
    k(f"""
    v_lshrrev_b32 v1, 5, v0
    v_mul_u32_u24 v1, {U_STRIDE}, v1
    v_and_b32 v2, 31, v0
    v_lshlrev_b32 v2, 5, v2
    v_add_u32 v1, v1, v2
    v_mov_b32 v4, 0
    v_mov_b32 v5, 0
    v_mov_b32 v6, 0
    v_mov_b32 v7, 0
    ds_write_b128 v1, v[4:7]
    ds_write_b128 v1, v[4:7] offset:16
    """)
    k(f"""
    v_and_b32 v1, 63, v0
    v_lshrrev_b32 v2, 2, v1
    v_mul_u32_u24 v2, {HC_COPY}, v2
    v_and_b32 v3, 3, v1
    v_lshlrev_b32 v3, 4, v3
    """)
    k(f"""
    v_add_u32 v1, v2, v3
    v_add_u32 v1, {HC_BASE}, v1
    ds_write_b128 v1, v[4:7]
    """)
    neg = 0xffff0000
    k(f"""
    s_add_u32 s22, s21, 1
    s_lshl_b32 s22, s22, 1                     ; iterations = 2(q+1)
    s_lshl_b32 s3, s20, 4                      ; cg*16
    v_mul_u32_u24 v1, {ROWB}, v0               ; row*1152
    v_add_u32 v1, s3, v1                       ; voff
    v_lshlrev_b32 v2, 1, v0
    v_add_u32 v2, 1024, v2
    s_mov_b32 s23, 0xffff0000
    """)
    lp = "conv_p1"
    k.label(lp)
    k(f"""
    v_subrev_u32 v3, {ROWB}, v1
    v_subrev_u32 v4, {2*ROWB}, v1
    v_subrev_u32 v5, {3*ROWB}, v1
    buffer_load_dwordx4 v[8:11], v5, s[24:27], 0 offen     ; k[s-3]
    buffer_load_dwordx4 v[12:15], v4, s[24:27], 0 offen    ; k[s-2]
    buffer_load_dwordx4 v[16:19], v3, s[24:27], 0 offen    ; k[s-1]
    buffer_load_dwordx4 v[20:23], v1, s[24:27], 0 offen    ; k[s]
    buffer_load_dwordx4 v[24:27], v1, s[28:31], 0 offen    ; v[s]
    s_waitcnt vmcnt(0)
    """)
    for p in range(4):
        for t in range(4):
            src = 8 + 4 * t + p
            ta = 32 + (2 * p) * 4 + (3 - t)
            tb = 32 + (2 * p + 1) * 4 + (3 - t)
            k(f"""
            v_lshlrev_b32 v28, 16, v{src}
            v_and_b32 v29, s23, v{src}
            v_mul_f32 v28, s{ta}, v28
            v_mul_f32 v29, s{tb}, v29
            """)
            if t == 0:
                k("v_cvt_pk_bf16_f32 v30, v28, v29")
            else:
                k(f"""
                v_cvt_pk_bf16_f32 v31, v28, v29
                v_lshlrev_b32 v28, 16, v30
                v_and_b32 v29, s23, v30
                v_lshlrev_b32 v32, 16, v31
                v_and_b32 v33, s23, v31
                v_add_f32 v28, v28, v32
                v_add_f32 v29, v29, v33
                v_cvt_pk_bf16_f32 v30, v28, v29
                """)
        k(f"""
        v_lshlrev_b32 v28, 16, v30
        v_and_b32 v29, s23, v30
        v_lshlrev_b32 v32, 16, v{24+p}
        v_and_b32 v33, s23, v{24+p}
        v_mul_f32 v28, v28, v32
        v_mul_f32 v29, v29, v33
        v_cvt_pk_bf16_f32 v{36+p}, v28, v29
        ds_write_b16 v2, v{36+p} offset:{(2*p)*U_STRIDE}
        ds_write_b16_d16_hi v2, v{36+p} offset:{(2*p+1)*U_STRIDE}
        """)
    k(f"""
    v_add_u32 v1, {256*ROWB}, v1
    v_add_u32 v2, 512, v2
    s_sub_u32 s22, s22, 1
    s_cmp_lg_u32 s22, 0
    s_cbranch_scc1 {lp}
    s_waitcnt lgkmcnt(0)
    s_barrier
    """)
    k(f"""
    v_lshrrev_b32 v1, 6, v0                    ; wave
    v_and_b32 v2, 63, v0                       ; lane
    s_nop 0
    v_readfirstlane_b32 s22, v1
    s_nop 3
    s_mul_i32 s3, s22, {4*HC_COPY}
    s_add_u32 s3, s3, {HC_BASE + 64}
    v_lshlrev_b32 v3, 4, v2
    v_add_u32 v3, s3, v3
    v_lshrrev_b32 v4, 4, v2                    ; g
    v_and_b32 v5, 3, v2                        ; c
    v_bfe_u32 v6, v2, 2, 2                     ; r
    v_mul_u32_u24 v6, {HC_COPY}, v6
    v_lshlrev_b32 v7, 4, v4                    ; 16g bytes
    v_sub_u32 v6, v6, v7
    v_lshlrev_b32 v7, 3, v5                    ; 8c bytes
    v_add_u32 v6, v6, v7
    v_add_u32 v6, s3, v6
    v_subrev_u32 v6, 8, v6                     ; v6 = A base (h'=1)
    v_and_b32 v7, 15, v2                       ; j
    v_lshlrev_b32 v8, 6, v7                    ; 64j
    v_lshlrev_b32 v9, 4, v4                    ; 16g
    v_add_u32 v8, v8, v9
    s_lshl_b32 s3, s21, 10                     ; 2*32*16q
    s_add_u32 s3, s3, {1024 - 192}
    v_add_u32 v8, s3, v8
    v_lshlrev_b32 v9, 6, v7
    v_lshlrev_b32 v10, 3, v4
    v_add_u32 v9, v9, v10
    s_lshl_b32 s3, s21, 10
    s_add_u32 s3, s3, 1024
    v_add_u32 v9, s3, v9
    v_lshlrev_b32 v10, 9, v7
    v_lshlrev_b32 v11, 6, v4
    v_add_u32 v10, v10, v11
    v_add_u32 v10, {YS_BASE}, v10              ; v10
    s_mov_b32 s45, 0
    """)
    chl = "conv_ch"
    k.label(chl)
    k(f"""
    s_lshl_b32 s46, s22, 1
    s_add_u32 s46, s46, s45                    ; ch (0..7)
    s_lshl_b32 s47, s20, 3
    s_add_u32 s47, s47, s46                    ; d
    s_lshl_b32 s47, s47, 12                    ; d*4096
    v_lshlrev_b32 v11, 4, v2
    v_add_u32 v11, s47, v11
    v_mov_b32 v12, v3
    s_add_u32 s48, s21, 1                      ; iterations q+1
    v_cmp_eq_u32 s[50:51], 0, v2               ; lane 0
    """)
    hb = "conv_hb"
    k.label(hb)
    k(f"""
    v_subrev_u32 v13, 8, v11
    buffer_load_dwordx2 v[16:17], v13, s[92:95], 0 offen
    buffer_load_dwordx4 v[18:21], v11, s[92:95], 0 offen
    s_waitcnt vmcnt(0)
    v_cndmask_b32 v16, v16, 0, s[50:51]
    v_cndmask_b32 v17, v17, 0, s[50:51]
    s_mov_b64 s[50:51], 0
    v_alignbit_b32 v22, v17, v16, 16
    v_alignbit_b32 v23, v18, v17, 16
    v_alignbit_b32 v24, v19, v18, 16
    v_alignbit_b32 v25, v20, v19, 16
    v_alignbit_b32 v26, v21, v20, 16
    v_mov_b32 v28, v17
    v_mov_b32 v29, v18
    v_mov_b32 v30, v19
    v_mov_b32 v31, v20
    v_mov_b32 v32, v23
    v_mov_b32 v33, v24
    v_mov_b32 v34, v25
    v_mov_b32 v35, v26
    ds_write_b128 v12, v[18:21]
    ds_write_b128 v12, v[32:35] offset:{HC_COPY}
    ds_write_b128 v12, v[28:31] offset:{2*HC_COPY}
    ds_write_b128 v12, v[22:25] offset:{3*HC_COPY}
    v_add_u32 v11, 1024, v11
    v_add_u32 v12, 1024, v12
    s_sub_u32 s48, s48, 1
    s_cmp_lg_u32 s48, 0
    s_cbranch_scc1 {hb}
    s_mul_i32 s47, s46, {U_STRIDE}
    v_mov_b32 v12, v6
    v_add_u32 v13, s47, v8
    v_mov_b32 v40, 0
    v_mov_b32 v41, 0
    v_mov_b32 v42, 0
    v_mov_b32 v43, 0
    v_mov_b32 v44, 0
    v_mov_b32 v45, 0
    v_mov_b32 v46, 0
    v_mov_b32 v47, 0
    s_add_u32 s48, s21, 1
    s_lshl_b32 s48, s48, 2                     ; (16q+16)/4 iterations
    s_waitcnt lgkmcnt(0)
    """)
    ml = "conv_mm"
    k.label(ml)
    for uu in range(4):
        base = 48 + uu * 12
        k(f"""
        ds_read_b64_tr_b16 v[{base}:{base+1}], v12 offset:{8 + 64*uu}
        ds_read_b64_tr_b16 v[{base+2}:{base+3}], v12 offset:{0 + 64*uu}
        ds_read_b64_tr_b16 v[{base+4}:{base+5}], v12 offset:{8 + 32 + 64*uu}
        ds_read_b64_tr_b16 v[{base+6}:{base+7}], v12 offset:{0 + 32 + 64*uu}
        ds_read_b128 v[{base+8}:{base+11}], v13 offset:{(3-uu)*64}
        """)
    for uu in range(4):
        base = 48 + uu * 12
        k(f"""
        s_waitcnt lgkmcnt({(3-uu)*5})
        v_mfma_f32_16x16x32_bf16 v[40:43], v[{base}:{base+3}], v[{base+8}:{base+11}], v[40:43]
        v_mfma_f32_16x16x32_bf16 v[44:47], v[{base+4}:{base+7}], v[{base+8}:{base+11}], v[44:47]
        """)
    k(f"""
    v_add_u32 v12, 256, v12
    v_subrev_u32 v13, 256, v13
    s_sub_u32 s48, s48, 1
    s_cmp_lg_u32 s48, 0
    s_cbranch_scc1 {ml}
    ; epilogue
    v_add_u32 v13, s47, v9
    ds_read_b64 v[48:49], v13
    ds_read_b64 v[50:51], v13 offset:32
    s_lshl_b32 s47, s46, 1
    v_add_u32 v14, s47, v10
    s_mov_b32 s49, s64
    """)
    for ch in range(1, 8):
        k(f"""
        s_cmp_eq_u32 s46, {ch}
        s_cselect_b32 s49, s{64+ch}, s49
        """)
    k("s_nop 7\ns_waitcnt lgkmcnt(0)")
    for mt in range(2):
        a = 40 + 4 * mt
        kvr = 48 + 2 * mt
        for hh in range(2):
            k(f"""
            v_cvt_pk_bf16_f32 v52, v{a+2*hh}, v{a+2*hh+1}
            v_lshlrev_b32 v53, 16, v{kvr+hh}
            v_and_b32 v54, s23, v{kvr+hh}
            v_mul_f32 v53, s49, v53
            v_mul_f32 v54, s49, v54
            v_cvt_pk_bf16_f32 v55, v53, v54
            v_lshlrev_b32 v53, 16, v52
            v_and_b32 v54, s23, v52
            v_lshlrev_b32 v56, 16, v55
            v_and_b32 v57, s23, v55
            v_add_f32 v53, v53, v56
            v_add_f32 v54, v54, v57
            v_cvt_pk_bf16_f32 v52, v53, v54
            ds_write_b16 v14, v52 offset:{mt*256 + (2*hh)*16}
            ds_write_b16_d16_hi v14, v52 offset:{mt*256 + (2*hh+1)*16}
            """)
    k(f"""
    s_add_u32 s45, s45, 1
    s_cmp_lt_u32 s45, 2
    s_cbranch_scc1 {chl}
    s_waitcnt lgkmcnt(0)
    s_barrier
    v_lshlrev_b32 v1, 4, v0
    v_add_u32 v1, {YS_BASE}, v1
    ds_read_b128 v[4:7], v1
    ds_read_b128 v[8:11], v1 offset:4096
    s_lshl_b32 s3, s21, 9                      ; 512q
    v_add_u32 v2, s3, v0
    v_mul_u32_u24 v2, {ROWB}, v2
    s_lshl_b32 s3, s20, 4
    v_add_u32 v2, s3, v2
    v_add_u32 v3, {256*ROWB}, v2
    s_waitcnt lgkmcnt(0)
    buffer_store_dwordx4 v[4:7], v2, s[96:99], 0 offen
    buffer_store_dwordx4 v[8:11], v3, s[96:99], 0 offen
    """)
    k.label(done)
    k("s_endpgm")
    return kd(name, 96)


def allreduce(k, v, tmp, sbase):
    for mod in ["quad_perm:[1,0,3,2]", "quad_perm:[2,3,0,1]", "row_half_mirror", "row_mirror"]:
        k(f"""
        s_nop 1
        v_add_f32_dpp v{tmp}, v{v}, v{v} {mod} row_mask:0xf bank_mask:0xf
        v_mov_b32 v{v}, v{tmp}
        """)
    k(f"""
    s_nop 1
    v_readlane_b32 s{sbase}, v{v}, 0
    v_readlane_b32 s{sbase+1}, v{v}, 16
    v_readlane_b32 s{sbase+2}, v{v}, 32
    v_readlane_b32 s{sbase+3}, v{v}, 48
    s_nop 3
    v_mov_b32 v{v}, s{sbase}
    v_add_f32 v{v}, s{sbase+1}, v{v}
    v_add_f32 v{v}, s{sbase+2}, v{v}
    v_add_f32 v{v}, s{sbase+3}, v{v}
    """)


def unpack8(k, dst, src):
    for i in range(4):
        k(f"""
        v_lshlrev_b32 v{dst+2*i}, 16, v{src+i}
        v_and_b32 v{dst+2*i+1}, s23, v{src+i}
        """)


def round16(k, x):
    pass


def layernorm(k, x, o, t):
    k(f"v_add_f32 v{t}, v{x}, v{x+1}")
    for i in range(2, 16):
        k(f"v_add_f32 v{t}, v{t}, v{x+i}")
    allreduce(k, t, t + 1, 40)
    k(f"""
    v_mul_f32 v{t}, s24, v{t}
    """)
    for i in range(16):
        k(f"v_sub_f32 v{o+i}, v{x+i}, v{t}")
    for i in range(8, 16):
        k(f"v_mul_f32 v{o+i}, v{o+i}, v30")
    k(f"v_mul_f32 v{t+2}, v{o}, v{o}")
    for i in range(1, 16):
        k(f"v_fmac_f32 v{t+2}, v{o+i}, v{o+i}")
    allreduce(k, t + 2, t + 3, 40)
    k(f"""
    v_mul_f32 v{t+2}, s24, v{t+2}
    v_cvt_pk_bf16_f32 v{t+3}, v{t}, v{t+2}
    v_lshlrev_b32 v{t}, 16, v{t+3}             ; m_bf
    v_and_b32 v{t+2}, s23, v{t+3}              ; v_bf
    v_add_f32 v{t+2}, s25, v{t+2}              ; + eps
    v_cvt_pk_bf16_f32 v{t+2}, v{t+2}, v{t+2}
    v_lshlrev_b32 v{t+2}, 16, v{t+2}
    v_sqrt_f32 v{t+2}, v{t+2}
    s_nop 0
    v_cvt_pk_bf16_f32 v{t+2}, v{t+2}, v{t+2}
    v_lshlrev_b32 v{t+2}, 16, v{t+2}
    v_rcp_f32 v{t+4}, v{t+2}
    s_nop 0
    """)
    for i in range(0, 16, 2):
        k(f"""
        v_sub_f32 v{o+i}, v{x+i}, v{t}
        v_sub_f32 v{o+i+1}, v{x+i+1}, v{t}
        v_cvt_pk_bf16_f32 v{t+5}, v{o+i}, v{o+i+1}
        v_lshlrev_b32 v{o+i}, 16, v{t+5}
        v_and_b32 v{o+i+1}, s23, v{t+5}
        v_mul_f32 v{t+6}, v{o+i}, v{t+4}
        v_mul_f32 v{t+7}, v{o+i+1}, v{t+4}
        v_fma_f32 v{o+i}, -v{t+6}, v{t+2}, v{o+i}
        v_fma_f32 v{o+i+1}, -v{t+7}, v{t+2}, v{o+i+1}
        v_fmac_f32 v{t+6}, v{o+i}, v{t+4}
        v_fmac_f32 v{t+7}, v{o+i+1}, v{t+4}
        v_cvt_pk_bf16_f32 v{t+5}, v{t+6}, v{t+7}
        v_lshlrev_b32 v{o+i}, 16, v{t+5}
        v_and_b32 v{o+i+1}, s23, v{t+5}
        """)


def pack_store(k, x, p, voffA, voffB, srdn):
    for i in range(8):
        k(f"v_cvt_pk_bf16_f32 v{p+i}, v{x+2*i}, v{x+2*i+1}")
    k(f"""
    buffer_store_dwordx4 v[{p}:{p+3}], v{voffA}, s[{srdn}:{srdn+3}], 0 offen
    s_mov_b64 exec, s[26:27]
    buffer_store_dwordx4 v[{p+4}:{p+7}], v{voffB}, s[{srdn}:{srdn+3}], 0 offen
    s_mov_b64 exec, -1
    """)


def gen_row(k, mode):
    name = f"row{mode}_kernel"
    kernel_begin(k, name)
    done = f"row{mode}_done"
    k(f"""
    s_cmp_ge_u32 s2, 512
    s_cbranch_scc1 {done}
    s_load_dwordx2 s[4:5], s[0:1], {KA_Q}
    s_load_dwordx2 s[6:7], s[0:1], {KA_WS}
    s_load_dwordx2 s[8:9], s[0:1], {KA_OUT}
    s_mov_b32 s23, 0xffff0000
    s_mov_b32 s24, 0x3ae38e39                  ; 1/576
    s_mov_b32 s25, 0x3727c5ac                  ; 1e-5
    s_mov_b64 s[26:27], 0xff
    v_lshrrev_b32 v1, 6, v0
    v_and_b32 v2, 63, v0
    s_lshl_b32 s3, s2, 2
    v_add_u32 v1, s3, v1                       ; row
    v_mul_u32_u24 v3, {ROWB}, v1
    v_lshlrev_b32 v4, 4, v2
    v_add_u32 v3, v3, v4                       ; voffA
    v_add_u32 v4, 1024, v3                     ; voffB
    v_cmp_gt_u32 vcc, 8, v2
    v_mov_b32 v30, 0
    v_mov_b32 v31, 1.0
    s_nop 1
    v_cndmask_b32 v30, v30, v31, vcc
    s_waitcnt lgkmcnt(0)
    """)
    if mode == 0:
        srd(k, 12, 4, S * ROWB)
    elif mode == 1:
        srd(k, 12, 6, S * ROWB, WS_X1)
    else:
        srd(k, 12, 6, S * ROWB, WS_X3)
    srd(k, 16, 6, S * ROWB, WS_Y)
    srd(k, 28, 6, NSPLIT * S * D * 4, WS_P)
    if mode == 0:
        srd(k, 32, 6, S * ROWB, WS_X1)
    elif mode == 1:
        srd(k, 32, 6, S * ROWB, WS_X3)
    else:
        srd(k, 32, 8, S * ROWB)
    srd(k, 36, 6, S * ROWB, WS_XN)
    k(f"""
    v_mov_b32 v36, 0
    v_mov_b32 v37, 0
    v_mov_b32 v38, 0
    v_mov_b32 v39, 0
    v_mov_b32 v44, 0
    v_mov_b32 v45, 0
    v_mov_b32 v46, 0
    v_mov_b32 v47, 0
    buffer_load_dwordx4 v[32:35], v3, s[12:15], 0 offen
    """)
    if mode != 2:
        k(f"buffer_load_dwordx4 v[40:43], v3, s[16:19], 0 offen")
    k("s_mov_b64 exec, s[26:27]")
    k(f"buffer_load_dwordx4 v[36:39], v4, s[12:15], 0 offen")
    if mode != 2:
        k(f"buffer_load_dwordx4 v[44:47], v4, s[16:19], 0 offen")
    k("s_mov_b64 exec, -1")
    if mode != 0:
        k(f"""
        v_lshlrev_b32 v5, 1, v3
        v_add_u32 v6, 2048, v5
        """)
        for i in range(64, 128):
            k(f"v_mov_b32 v{i}, 0")
        for sk in range(NSPLIT):
            b = 64 + sk * 16
            k(f"""
            s_mov_b32 s3, {sk * S * D * 4}
            buffer_load_dwordx4 v[{b}:{b+3}], v5, s[28:31], s3 offen
            buffer_load_dwordx4 v[{b+4}:{b+7}], v5, s[28:31], s3 offen offset:16
            """)
        k("s_mov_b64 exec, s[26:27]")
        for sk in range(NSPLIT):
            b = 64 + sk * 16 + 8
            k(f"""
            s_mov_b32 s3, {sk * S * D * 4}
            buffer_load_dwordx4 v[{b}:{b+3}], v6, s[28:31], s3 offen
            buffer_load_dwordx4 v[{b+4}:{b+7}], v6, s[28:31], s3 offen offset:16
            """)
        k("s_mov_b64 exec, -1")
    k("s_waitcnt vmcnt(0)")
    unpack8(k, 8, 32)
    unpack8(k, 16, 36)
    if mode != 0:
        for i in range(16):
            k(f"""
            v_add_f32 v{64+i}, v{64+i}, v{80+i}
            v_add_f32 v{96+i}, v{96+i}, v{112+i}
            v_add_f32 v{64+i}, v{64+i}, v{96+i}
            """)
        for i in range(0, 16, 2):
            k(f"""
            v_cvt_pk_bf16_f32 v48, v{64+i}, v{64+i+1}
            v_lshlrev_b32 v49, 16, v48
            v_and_b32 v50, s23, v48
            v_add_f32 v49, v49, v{8+i}
            v_add_f32 v50, v50, v{8+i+1}
            v_cvt_pk_bf16_f32 v48, v49, v50
            v_lshlrev_b32 v{8+i}, 16, v48
            v_and_b32 v{8+i+1}, s23, v48
            """)
    if mode == 2:
        pack_store(k, 8, 48, 3, 4, 32)
    else:
        layernorm(k, 8, 64, 80)
        unpack8(k, 96, 40)
        unpack8(k, 104, 44)
        for i in range(0, 16, 2):
            k(f"""
            v_mul_f32 v49, v{64+i}, v{96+i}
            v_mul_f32 v50, v{64+i+1}, v{96+i+1}
            v_cvt_pk_bf16_f32 v48, v49, v50
            v_lshlrev_b32 v49, 16, v48
            v_and_b32 v50, s23, v48
            v_add_f32 v49, v49, v{8+i}
            v_add_f32 v50, v50, v{8+i+1}
            v_cvt_pk_bf16_f32 v48, v49, v50
            v_lshlrev_b32 v{8+i}, 16, v48
            v_and_b32 v{8+i+1}, s23, v48
            """)
        pack_store(k, 8, 48, 3, 4, 32)
        layernorm(k, 8, 64, 80)
        pack_store(k, 64, 48, 3, 4, 36)
    k.label(done)
    k("s_endpgm")
    return kd(name, 128)


def gen_gemm(k, which):
    g1 = which == 1
    name = f"gemm{which}_kernel"
    WM = 4 if g1 else 2
    WF = 3
    NW = WM * WF
    NMAT = 2 if g1 else 1
    BM = WM * 64
    XROWB = ROWB if g1 else F * 2
    WROWB = F * 2 if g1 else ROWB
    NSTAGE = 9 if g1 else 18
    XT = BM * 128
    WT = 64 * 288
    STAGE = XT + NMAT * WT
    LDS = 2 * STAGE
    NXI = XT // 1024
    NWI = 18
    NI = NXI + NMAT * NWI
    PER = (NI + NW - 1) // NW
    kernel_begin(k, name)
    done = f"gemm{which}_done"
    k(f"""
    s_cmp_ge_u32 s2, 256
    s_cbranch_scc1 {done}
    s_load_dwordx2 s[4:5], s[0:1], {KA_WS}
    s_load_dwordx2 s[6:7], s[0:1], {KA_W1 if g1 else KA_W2}
    s_load_dwordx2 s[8:9], s[0:1], {KA_W3}
    s_and_b32 s20, s2, 7                       ; xcd
    s_lshr_b32 s21, s2, 3                      ; idx 0..31
    """)
    if g1:
        k("""
        s_and_b32 s22, s21, 7                  ; mt
        s_lshr_b32 s23, s21, 3
        s_lshl_b32 s3, s20, 2
        s_add_u32 s23, s23, s3                 ; ft 0..31
        s_mov_b32 s24, 0
        """)
    else:
        k(f"""
        s_and_b32 s22, s21, 7
        s_and_b32 s3, s20, 1
        s_lshl_b32 s3, s3, 3
        s_add_u32 s22, s22, s3                 ; mt 0..15
        s_lshr_b32 s23, s21, 3                 ; nt 0..3
        s_lshr_b32 s25, s20, 1                 ; split
        s_mul_i32 s24, s25, {F // NSPLIT}      ; k offset
        """)
    k("s_waitcnt lgkmcnt(0)")
    if g1:
        srd(k, 12, 4, S * ROWB, WS_XN)
        srd(k, 16, 6, D * F * 2)
        srd(k, 64, 8, D * F * 2)
        srd(k, 32, 4, S * F * 2, WS_H)
    else:
        srd(k, 12, 4, S * F * 2, WS_H)
        srd(k, 16, 6, D * F * 2)
        srd(k, 32, 4, NSPLIT * S * D * 4, WS_P)
    k(f"""
    v_lshrrev_b32 v1, 6, v0
    v_and_b32 v2, 63, v0
    s_nop 0
    v_readfirstlane_b32 s26, v1                ; wave
    s_nop 3
    """)
    for j in range(PER):
        k(f"s_add_u32 s27, s26, {NW*j}")
        k(f"""
        s_lshl_b32 s3, s27, 3
        v_lshrrev_b32 v3, 3, v2
        v_add_u32 v3, s3, v3                   ; row
        v_bfe_u32 v4, v3, 1, 3
        v_and_b32 v5, 7, v2
        v_xor_b32 v4, v4, v5
        v_lshlrev_b32 v4, 4, v4
        s_mul_i32 s3, s22, {BM}
        v_add_u32 v3, s3, v3
        s_mov_b32 s3, {XROWB}
        v_mul_lo_u32 v3, v3, s3
        v_add_u32 v3, v3, v4                   ; X voff
        """)
        k(f"""
        s_sub_u32 s28, s27, {NXI}
        s_cmp_ge_i32 s28, {NWI}
        s_cselect_b32 s29, {NWI}, 0
        s_sub_u32 s28, s28, s29
        s_lshl_b32 s3, s28, 6
        v_add_u32 v4, s3, v2                   ; pos/16 : 0..1151
        v_mul_u32_u24 v5, 3641, v4
        v_lshrrev_b32 v5, 16, v5               ; slot
        v_mul_u32_u24 v6, 18, v5
        v_sub_u32 v6, v4, v6                   ; chunk 0..17
        v_bfe_u32 v7, v5, 3, 1
        v_lshlrev_b32 v7, 2, v7
        v_xor_b32 v5, v5, v7                   ; k row
        s_mov_b32 s3, {WROWB}
        v_mul_lo_u32 v5, v5, s3
        v_lshlrev_b32 v6, 4, v6
        v_add_u32 v5, v5, v6
        s_mul_i32 s3, s23, 288
        v_add_u32 v5, s3, v5                   ; W voff
        s_cmp_lt_u32 s27, {NXI}
        s_cselect_b64 s[36:37], -1, 0
        s_cselect_b32 s{52+j}, 0, 1            ; kind: 0 = X
        s_cmp_ge_u32 s27, {NXI+NWI}
        s_cselect_b32 s3, 2, s{52+j}
        s_mov_b32 s{52+j}, s3
        s_cmp_ge_u32 s27, {NI}
        s_cselect_b32 s3, 3, s{52+j}
        s_mov_b32 s{52+j}, s3
        s_lshl_b32 s{40+j}, s27, 10
        s_nop 1
        v_cndmask_b32 v{10+j}, v5, v3, s[36:37]
        """)
    k(f"""
    s_cmp_ge_u32 s26, {2*WM}
    s_cselect_b32 s27, 2, 0
    s_cmp_ge_u32 s26, {WM}
    s_cselect_b32 s28, 1, 0
    s_cmp_ge_u32 s26, {2*WM}
    s_cselect_b32 s28, 2, s28
    s_mul_i32 s3, s28, {WM}
    s_sub_u32 s27, s26, s3                     ; wm = wave % WM
    v_and_b32 v3, 15, v2
    v_lshrrev_b32 v4, 4, v2                    ; g
    v_lshrrev_b32 v5, 1, v3
    v_xor_b32 v5, v5, v4
    v_lshlrev_b32 v5, 4, v5
    v_lshlrev_b32 v6, 7, v3                    ; row*128
    v_add_u32 v5, v5, v6
    s_lshl_b32 s3, s27, 13                     ; wm*64*128
    v_add_u32 v20, s3, v5
    v_xor_b32 v21, 64, v20                     ; kk=1
    v_add_u32 v22, {STAGE}, v20
    v_add_u32 v23, {STAGE}, v21
    v_bfe_u32 v5, v2, 2, 2                     ; r
    v_lshl_add_u32 v5, v4, 3, v5               ; 8g + r
    v_and_b32 v6, 1, v4
    v_lshlrev_b32 v6, 2, v6                    ; 4*(g&1)
    v_add_u32 v7, v5, v6                       ; slot h'=0
    v_xor_b32 v6, 4, v6
    v_add_u32 v8, v5, v6                       ; slot h'=1
    v_mul_u32_u24 v7, 288, v7
    v_mul_u32_u24 v8, 288, v8
    v_and_b32 v6, 3, v2
    v_lshlrev_b32 v6, 3, v6
    s_mul_i32 s3, s28, 96
    s_add_u32 s3, s3, {XT}
    v_add3_u32 v24, v7, v6, s3
    v_add3_u32 v25, v8, v6, s3                 ; h'=1
    v_add_u32 v26, {STAGE}, v24
    v_add_u32 v27, {STAGE}, v25
    """)
    NFT = 3 * NMAT
    ACC = 72
    for i in range(NFT * 16):
        k(f"v_mov_b32 v{ACC+i}, 0")

    def dma(stage_buf, first):
        k(f"""
        s_lshl_b32 s30, s24, 1                 ; X soffset = k*2
        s_mul_i32 s31, s24, {WROWB}            ; W soffset
        """)
        for j in range(PER):
            lx, lw, lw2, ln = [k.newlabel(f"g{which}d") for _ in range(4)]
            k(f"""
            s_add_u32 m0, s{40+j}, {stage_buf*STAGE}
            s_cmp_eq_u32 s{52+j}, 0
            s_cbranch_scc1 {lx}
            s_cmp_eq_u32 s{52+j}, 1
            s_cbranch_scc1 {lw}
            s_cmp_eq_u32 s{52+j}, 2
            s_cbranch_scc1 {lw2}
            s_branch {ln}
            """)
            k.label(lx)
            k(f"buffer_load_dwordx4 v{10+j}, s[12:15], s30 offen lds\ns_branch {ln}")
            k.label(lw)
            k(f"buffer_load_dwordx4 v{10+j}, s[16:19], s31 offen lds\ns_branch {ln}")
            k.label(lw2)
            if g1:
                k(f"buffer_load_dwordx4 v{10+j}, s[64:67], s31 offen lds")
            k.label(ln)
        k("s_add_u32 s24, s24, 64")

    def compute(buf):
        xa = 20 + 2 * buf
        wa = 24 + 2 * buf
        for kk in range(2):
            for mt in range(4):
                k(f"ds_read_b128 v[{32+4*mt}:{35+4*mt}], v{xa+kk} offset:{mt*2048}")
            for ft in range(NFT):
                mat, f3 = divmod(ft, 3)
                off = mat * WT + kk * 32 * 288 + f3 * 32
                k(f"""
                ds_read_b64_tr_b16 v[{48+4*ft}:{49+4*ft}], v{wa} offset:{off}
                ds_read_b64_tr_b16 v[{50+4*ft}:{51+4*ft}], v{wa+1} offset:{off}
                """)
            for ft in range(NFT):
                k(f"s_waitcnt lgkmcnt({2*(NFT-1-ft)})")
                for mt in range(4):
                    a = ACC + (ft * 4 + mt) * 4
                    k(f"v_mfma_f32_16x16x32_bf16 v[{a}:{a+3}], v[{48+4*ft}:{51+4*ft}], v[{32+4*mt}:{35+4*mt}], v[{a}:{a+3}]")

    dma(0, True)
    k(f"s_mov_b32 s38, {NSTAGE}")
    lp = f"g{which}_loop"
    k.label(lp)
    for buf in range(2):
        skip = k.newlabel(f"g{which}s")
        k(f"""
        s_waitcnt vmcnt(0)
        s_barrier
        s_cmp_le_u32 s38, 1
        s_cbranch_scc1 {skip}
        """)
        dma(1 - buf, False)
        k.label(skip)
        compute(buf)
        k("s_sub_u32 s38, s38, 1\ns_cmp_eq_u32 s38, 0")
        if buf == 0:
            k(f"s_cbranch_scc1 g{which}_epi")
        else:
            k(f"s_cbranch_scc0 {lp}")
    k.label(f"g{which}_epi")
    k("s_nop 7\ns_nop 7")
    if g1:
        k(f"""
        v_and_b32 v3, 15, v2
        v_lshrrev_b32 v4, 4, v2
        s_lshl_b32 s3, s22, 8
        v_add_u32 v3, s3, v3
        s_lshl_b32 s3, s27, 6
        v_add_u32 v3, s3, v3
        s_mov_b32 s3, {F*2}
        v_mul_lo_u32 v3, v3, s3
        v_lshlrev_b32 v4, 3, v4
        v_add_u32 v3, v3, v4
        s_mul_i32 s3, s23, 288
        v_add_u32 v3, s3, v3
        s_mul_i32 s3, s28, 96
        v_add_u32 v3, s3, v3
        s_mov_b32 s23, 0xffff0000
        s_mov_b32 s24, 0xbfb8aa3b               ; -log2(e)
        """)
        for f3 in range(3):
            for mt in range(4):
                ga = ACC + (f3 * 4 + mt) * 4
                ua = ACC + ((3 + f3) * 4 + mt) * 4
                for hh in range(2):
                    k(f"""
                    v_cvt_pk_bf16_f32 v32, v{ga+2*hh}, v{ga+2*hh+1}
                    v_cvt_pk_bf16_f32 v33, v{ua+2*hh}, v{ua+2*hh+1}
                    v_lshlrev_b32 v34, 16, v32
                    v_and_b32 v35, s23, v32
                    v_mul_f32 v36, s24, v34
                    v_mul_f32 v37, s24, v35
                    v_exp_f32 v36, v36
                    v_exp_f32 v37, v37
                    s_nop 0
                    v_add_f32 v36, 1.0, v36
                    v_add_f32 v37, 1.0, v37
                    v_rcp_f32 v36, v36
                    v_rcp_f32 v37, v37
                    s_nop 0
                    v_mul_f32 v34, v34, v36
                    v_mul_f32 v35, v35, v37
                    v_cvt_pk_bf16_f32 v32, v34, v35
                    v_lshlrev_b32 v34, 16, v32
                    v_and_b32 v35, s23, v32
                    v_lshlrev_b32 v36, 16, v33
                    v_and_b32 v37, s23, v33
                    v_mul_f32 v34, v34, v36
                    v_mul_f32 v35, v35, v37
                    v_cvt_pk_bf16_f32 v{38+hh}, v34, v35
                    """)
                k(f"""
                v_add_u32 v4, {mt*16*F*2}, v3
                buffer_store_dwordx2 v[38:39], v4, s[32:35], 0 offen offset:{f3*32}
                s_nop 1
                """)
    else:
        k(f"""
        v_and_b32 v3, 15, v2
        v_lshrrev_b32 v4, 4, v2
        s_lshl_b32 s3, s22, 7
        v_add_u32 v3, s3, v3
        s_lshl_b32 s3, s27, 6
        v_add_u32 v3, s3, v3
        v_mul_u32_u24 v3, {D*4}, v3
        v_lshlrev_b32 v4, 4, v4
        v_add_u32 v3, v3, v4
        s_mul_i32 s3, s23, 576
        v_add_u32 v3, s3, v3
        s_mul_i32 s3, s28, 192
        v_add_u32 v3, s3, v3
        s_mul_i32 s3, s25, {S*D*4}
        """)
        for f3 in range(3):
            for mt in range(4):
                a = ACC + (f3 * 4 + mt) * 4
                k(f"""
                v_add_u32 v4, {mt*16*D*4}, v3
                buffer_store_dwordx4 v[{a}:{a+3}], v4, s[32:35], s3 offen offset:{f3*64}
                """)
    k.label(done)
    k("s_endpgm")
    return kd(name, ACC + NFT * 16), NW * 64, LDS


def main():
    k = K()
    kds = []
    kds.append(gen_conv(k))
    for m in range(3):
        kds.append(gen_row(k, m))
    kd1, t1, lds1 = gen_gemm(k, 1)
    kd2, t2, lds2 = gen_gemm(k, 2)
    kds += [kd1, kd2]
    launches = [
        ("conv_kernel", 288, 256, CONV_LDS),
        ("row0_kernel", 512, 256, 0),
        ("gemm1_kernel", 256, t1, lds1),
        ("gemm2_kernel", 256, t2, lds2),
        ("row1_kernel", 512, 256, 0),
        ("gemm1_kernel", 256, t1, lds1),
        ("gemm2_kernel", 256, t2, lds2),
        ("row2_kernel", 512, 256, 0),
    ]
    n = int(sys.argv[1]) if len(sys.argv) > 1 else len(launches)
    out = HEADER
    for (nm, g, b, l) in launches[:n]:
        out += f"; @launch kernel={nm} grid=({g},1,1) block=({b},1,1) lds={l}\n"
    out += '.amdgcn_target "amdgcn-amd-amdhsa--gfx950"\n.text\n'
    out += k.text()
    out += '.section .rodata,"a"\n' + "".join(kds)
    open(f"cdna_kernels/{NAME}.s", "w").write(out)


if __name__ == "__main__":
    main()
```

```python
import sys, os
EXP = os.environ.get('GEXP', '')

NAME = "interleave_layers__ssm_conv_h3__glu_gated_swiglu__prompt"
S, D, F = 2048, 576, 4608
KA_Q, KA_K, KA_V, KA_SH, KA_SK, KA_SD, KA_BX, KA_W1, KA_W3, KA_W2, KA_OUT, KA_DBG, KA_WS = [8 * i for i in range(13)]
WS_Y = 0
WS_X1 = 0x400000
WS_XN = 0x800000
WS_X3 = 0xC00000
WS_H = 0x1000000
WS_P = 0x3000000
ROWB = D * 2
NSPLIT = 4

HEADER = open(f"cdna_kernels/{NAME}.s.ref").read().split("; @launch")[0]


class K:
    def __init__(self):
        self.lines = []
        self.lbl = 0

    def __call__(self, s):
        for l in s.strip("\n").split("\n"):
            self.lines.append("    " + l.strip())

    def raw(self, s):
        self.lines.append(s)

    def label(self, name):
        self.lines.append(name + ":")

    def newlabel(self, p="L"):
        self.lbl += 1
        return f"{p}_{self.lbl}"

    def text(self):
        return "\n".join(self.lines) + "\n"


def srd(k, d, ptr_lo, nbytes, off=0):
    if off:
        k(f"s_add_u32 s{d}, s{ptr_lo}, {off}")
        k(f"s_addc_u32 s{d+1}, s{ptr_lo+1}, 0")
    else:
        k(f"s_mov_b32 s{d}, s{ptr_lo}")
        k(f"s_mov_b32 s{d+1}, s{ptr_lo+1}")
    k(f"s_mov_b32 s{d+2}, {nbytes}")
    k(f"s_mov_b32 s{d+3}, 0x00020000")


def kernel_begin(k, name):
    k.raw(f".globl {name}")
    k.raw(".p2align 8")
    k.raw(f".type {name},@function")
    k.label(name)


def kd(name, vgpr, sgpr=102, accum=None):
    if accum is None:
        accum = (vgpr + 3) // 4 * 4
    return f""".p2align 6
.amdhsa_kernel {name}
  .amdhsa_next_free_vgpr {vgpr}
  .amdhsa_next_free_sgpr {sgpr}
  .amdhsa_accum_offset {accum}
  .amdhsa_group_segment_fixed_size 0
  .amdhsa_kernarg_size 104
  .amdhsa_user_sgpr_count 2
  .amdhsa_user_sgpr_kernarg_segment_ptr 1
  .amdhsa_system_sgpr_workgroup_id_x 1
.end_amdhsa_kernel
"""


WS_KVT = 0x5000000
PRE_LDS = 64 * 144


def gen_pre(k):
    name = "pre_kernel"
    kernel_begin(k, name)
    done = "pre_done"
    k(f"""
    s_cmp_ge_u32 s2, 288
    s_cbranch_scc1 {done}
    s_load_dwordx4 s[4:7], s[0:1], {KA_K}
    s_load_dwordx2 s[8:9], s[0:1], {KA_SH}
    s_load_dwordx2 s[14:15], s[0:1], {KA_WS}
    s_mul_hi_u32 s20, s2, {(1 << 32) // 9 + 1}  ; rt
    s_mul_i32 s3, s20, 9
    s_sub_u32 s21, s2, s3                      ; ct
    s_mov_b32 s23, 0xffff0000
    v_lshrrev_b32 v1, 3, v0
    v_and_b32 v2, 7, v0                        ; chunk
    s_lshl_b32 s3, s20, 6
    v_add_u32 v3, s3, v1                       ; s
    v_mul_u32_u24 v3, {ROWB}, v3
    s_lshl_b32 s3, s21, 7
    v_lshl_add_u32 v4, v2, 4, s3
    v_add_u32 v3, v3, v4                       ; voff
    v_lshlrev_b32 v4, 2, v4
    s_waitcnt lgkmcnt(0)
    """)
    srd(k, 24, 4, S * ROWB)
    srd(k, 28, 6, S * ROWB)
    srd(k, 32, 8, D * 8)
    srd(k, 36, 14, D * S * 2, WS_KVT)
    k(f"""
    v_subrev_u32 v5, {ROWB}, v3
    v_subrev_u32 v6, {2*ROWB}, v3
    v_subrev_u32 v7, {3*ROWB}, v3
    buffer_load_dwordx4 v[8:11], v7, s[24:27], 0 offen
    buffer_load_dwordx4 v[12:15], v6, s[24:27], 0 offen
    buffer_load_dwordx4 v[16:19], v5, s[24:27], 0 offen
    buffer_load_dwordx4 v[20:23], v3, s[24:27], 0 offen
    buffer_load_dwordx4 v[24:27], v3, s[28:31], 0 offen
    buffer_load_dwordx4 v[40:43], v4, s[32:35], 0 offen
    buffer_load_dwordx4 v[44:47], v4, s[32:35], 0 offen offset:16
    buffer_load_dwordx4 v[48:51], v4, s[32:35], 0 offen offset:32
    buffer_load_dwordx4 v[52:55], v4, s[32:35], 0 offen offset:48
    v_mul_u32_u24 v56, {8*144}, v2
    v_lshl_add_u32 v56, v1, 1, v56
    s_waitcnt vmcnt(0)
    """)
    for p in range(4):
        for t in range(4):
            src = 8 + 4 * t + p
            tap = 3 - t
            ra = 40 + (2 * p) * 2 + tap // 2
            rb = 40 + (2 * p + 1) * 2 + tap // 2
            opa = f"v_lshlrev_b32 v34, 16, v{ra}" if tap % 2 == 0 else f"v_and_b32 v34, s23, v{ra}"
            opb = f"v_lshlrev_b32 v35, 16, v{rb}" if tap % 2 == 0 else f"v_and_b32 v35, s23, v{rb}"
            k(f"""
            {opa}
            {opb}
            v_lshlrev_b32 v28, 16, v{src}
            v_and_b32 v29, s23, v{src}
            v_mul_f32 v28, v34, v28
            v_mul_f32 v29, v35, v29
            """)
            if t == 0:
                k("v_cvt_pk_bf16_f32 v30, v28, v29")
            else:
                k(f"""
                v_cvt_pk_bf16_f32 v31, v28, v29
                v_lshlrev_b32 v28, 16, v30
                v_and_b32 v29, s23, v30
                v_lshlrev_b32 v32, 16, v31
                v_and_b32 v33, s23, v31
                v_add_f32 v28, v28, v32
                v_add_f32 v29, v29, v33
                v_cvt_pk_bf16_f32 v30, v28, v29
                """)
        k(f"""
        v_lshlrev_b32 v28, 16, v30
        v_and_b32 v29, s23, v30
        v_lshlrev_b32 v32, 16, v{24+p}
        v_and_b32 v33, s23, v{24+p}
        v_mul_f32 v28, v28, v32
        v_mul_f32 v29, v29, v33
        v_cvt_pk_bf16_f32 v{36+p}, v28, v29
        ds_write_b16 v56, v{36+p} offset:{(2*p)*144}
        ds_write_b16_d16_hi v56, v{36+p} offset:{(2*p+1)*144}
        """)
    k(f"""
    s_waitcnt lgkmcnt(0)
    s_barrier
    v_mul_u32_u24 v4, 144, v1
    v_lshl_add_u32 v4, v2, 4, v4
    ds_read_b128 v[8:11], v4
    s_lshl_b32 s3, s21, 6
    v_add_u32 v5, s3, v1                       ; d
    v_lshlrev_b32 v5, 12, v5
    v_lshl_add_u32 v5, v2, 4, v5
    s_lshl_b32 s3, s20, 7
    v_add_u32 v5, s3, v5
    s_waitcnt lgkmcnt(0)
    buffer_store_dwordx4 v[8:11], v5, s[36:39], 0 offen
    """)
    k.label(done)
    k("s_endpgm")
    return kd(name, 64)


HC_COPY = 4288
HC_BASE = 5120
RED_BASE = HC_BASE + 4 * HC_COPY
CONV_LDS = RED_BASE + 32768


def gen_conv(k):
    name = "conv_kernel"
    kernel_begin(k, name)
    done = "conv_done"
    k(f"""
    s_cmp_ge_u32 s2, {D}
    s_cbranch_scc1 {done}
    s_load_dwordx4 s[8:11], s[0:1], {KA_SK}
    s_load_dwordx2 s[14:15], s[0:1], {KA_WS}
    s_mov_b32 s23, 0xffff0000
    s_and_b32 s3, s2, 0xfffe
    s_lshl_b32 s3, s3, 1
    s_waitcnt lgkmcnt(0)
    s_add_u32 s10, s10, s3
    s_addc_u32 s11, s11, 0
    s_load_dword s49, s[10:11], 0
    """)
    srd(k, 24, 14, D * S * 2, WS_KVT)
    srd(k, 28, 8, D * S * 2)
    srd(k, 32, 14, S * ROWB, WS_Y)
    k(f"""
    s_lshl_b32 s47, s2, 12                     ; d*4096
    v_lshlrev_b32 v1, 4, v0                    ; 16*t
    v_add_u32 v2, s47, v1
    v_subrev_u32 v3, 8, v2
    buffer_load_dwordx4 v[4:7], v2, s[24:27], 0 offen      ; u chunk
    buffer_load_dwordx2 v[16:17], v3, s[28:31], 0 offen
    buffer_load_dwordx4 v[18:21], v2, s[28:31], 0 offen
    v_mov_b32 v8, 0
    v_mov_b32 v9, 0
    v_mov_b32 v10, 0
    v_mov_b32 v11, 0
    v_cmp_eq_u32 s[50:51], 0, v0
    v_cmp_gt_u32 vcc, 64, v0
    s_and_saveexec_b64 s[52:53], vcc
    ds_write_b128 v1, v[8:11]                  ; u pad (1024 B)
    v_and_b32 v12, 15, v0
    v_lshrrev_b32 v13, 2, v12
    v_mul_u32_u24 v13, {HC_COPY}, v13
    v_and_b32 v12, 3, v12
    v_lshl_add_u32 v13, v12, 4, v13
    ds_write_b128 v13, v[8:11] offset:{HC_BASE}
    s_mov_b64 exec, s[52:53]
    s_waitcnt vmcnt(0)
    ds_write_b128 v1, v[4:7] offset:1024
    v_cndmask_b32 v16, v16, 0, s[50:51]
    v_cndmask_b32 v17, v17, 0, s[50:51]
    v_alignbit_b32 v22, v17, v16, 16
    v_alignbit_b32 v23, v18, v17, 16
    v_alignbit_b32 v24, v19, v18, 16
    v_alignbit_b32 v25, v20, v19, 16
    v_alignbit_b32 v26, v21, v20, 16
    v_mov_b32 v28, v17
    v_mov_b32 v29, v18
    v_mov_b32 v30, v19
    v_mov_b32 v31, v20
    v_mov_b32 v32, v23
    v_mov_b32 v33, v24
    v_mov_b32 v34, v25
    v_mov_b32 v35, v26
    ds_write_b128 v1, v[18:21] offset:{HC_BASE+64}
    ds_write_b128 v1, v[32:35] offset:{HC_BASE+64+HC_COPY}
    ds_write_b128 v1, v[28:31] offset:{HC_BASE+64+2*HC_COPY}
    ds_write_b128 v1, v[22:25] offset:{HC_BASE+64+3*HC_COPY}
    ; addresses
    v_lshrrev_b32 v1, 6, v0
    v_and_b32 v2, 63, v0
    s_nop 0
    v_readfirstlane_b32 s22, v1                ; wave
    s_nop 3
    v_lshrrev_b32 v4, 4, v2                    ; g
    v_and_b32 v5, 3, v2                        ; c
    v_bfe_u32 v6, v2, 2, 2                     ; r
    v_mul_u32_u24 v6, {HC_COPY}, v6
    v_lshlrev_b32 v7, 4, v4
    v_sub_u32 v6, v6, v7
    v_lshlrev_b32 v7, 3, v5
    v_add_u32 v6, v6, v7
    s_lshl_b32 s3, s22, 6                      ; w*64 bytes
    s_add_u32 s3, s3, {HC_BASE + 64 - 8}
    v_add_u32 v12, s3, v6                      ; A base (c' = w)
    v_and_b32 v7, 15, v2                       ; jj
    v_lshlrev_b32 v8, 6, v7
    v_lshl_add_u32 v8, v4, 4, v8               ; 64jj + 16g
    s_lshl_b32 s3, s22, 6
    s_sub_u32 s3, 64, s3
    v_add_u32 v13, s3, v8
    v_lshlrev_b32 v9, 6, v7
    v_lshl_add_u32 v9, v4, 3, v9
    s_lshl_b32 s3, s22, 10
    s_add_u32 s3, s3, 1024
    v_add_u32 v9, s3, v9
    s_lshl_b32 s3, s22, 4
    v_add_u32 v10, s3, v7
    v_mul_u32_u24 v10, {D*64}, v10
    v_lshl_add_u32 v10, v4, 3, v10
    s_lshl_b32 s3, s2, 6
    v_add_u32 v10, s3, v10
    v_lshlrev_b32 v11, 4, v2
    s_lshl_b32 s3, s22, 13
    s_add_u32 s3, s3, {RED_BASE}
    v_add_u32 v14, s3, v11
    s_lshl_b32 s3, s22, 11
    s_add_u32 s3, s3, {RED_BASE}
    v_add_u32 v15, s3, v11
    """)
    for i in range(32):
        k(f"v_mov_b32 v{16+i}, 0")
    k("s_waitcnt lgkmcnt(0)\ns_barrier")
    FR = 48
    for t in range(4):
        nt = 4 - t
        per = 8 + 4 * nt
        for i in range(4):
            base = FR + i * 24
            aoff = (16 * t + 4 * i) * 64
            k(f"""
            ds_read_b64_tr_b16 v[{base}:{base+1}], v12 offset:{8 + aoff}
            ds_read_b64_tr_b16 v[{base+2}:{base+3}], v12 offset:{0 + aoff}
            ds_read_b64_tr_b16 v[{base+4}:{base+5}], v12 offset:{8 + 32 + aoff}
            ds_read_b64_tr_b16 v[{base+6}:{base+7}], v12 offset:{0 + 32 + aoff}
            """)
            for j in range(t, 4):
                bo = 960 + 1024 * j - 1024 * t - 256 * i
                r = base + 8 + 4 * (j - t)
                k(f"ds_read_b128 v[{r}:{r+3}], v13 offset:{bo}")
        for i in range(4):
            base = FR + i * 24
            rem = (3 - i) * (4 + nt)
            k(f"s_waitcnt lgkmcnt({min(rem, 15)})")
            for j in range(t, 4):
                r = base + 8 + 4 * (j - t)
                a = 16 + 8 * j
                k(f"""
                v_mfma_f32_16x16x32_bf16 v[{a}:{a+3}], v[{base}:{base+3}], v[{r}:{r+3}], v[{a}:{a+3}]
                v_mfma_f32_16x16x32_bf16 v[{a+4}:{a+7}], v[{base+4}:{base+7}], v[{r}:{r+3}], v[{a+4}:{a+7}]
                """)
    k("s_nop 7\ns_nop 7")
    for x in range(8):
        k(f"ds_write_b128 v14, v[{16+4*x}:{19+4*x}] offset:{x*1024}")
    k(f"""
    ds_read_b64 v[88:89], v9
    ds_read_b64 v[90:91], v9 offset:32
    s_and_b32 s3, s2, 1
    s_lshl_b32 s46, s49, 16
    s_and_b32 s49, s49, 0xffff0000
    s_cmp_eq_u32 s3, 0
    s_cselect_b32 s49, s46, s49
    s_waitcnt lgkmcnt(0)
    s_barrier
    """)
    for w in range(4):
        for mt in range(2):
            r = 48 + w * 8 + mt * 4
            k(f"ds_read_b128 v[{r}:{r+3}], v15 offset:{w*8192 + mt*1024}")
    k("s_waitcnt lgkmcnt(0)")
    for x in range(8):
        k(f"""
        v_add_f32 v{48+x}, v{48+x}, v{56+x}
        v_add_f32 v{64+x}, v{64+x}, v{72+x}
        v_add_f32 v{40+x}, v{48+x}, v{64+x}
        """)
    for mt in range(2):
        a = 40 + 4 * mt
        kvr = 88 + 2 * mt
        for hh in range(2):
            k(f"""
            v_cvt_pk_bf16_f32 v52, v{a+2*hh}, v{a+2*hh+1}
            v_lshlrev_b32 v53, 16, v{kvr+hh}
            v_and_b32 v54, s23, v{kvr+hh}
            v_mul_f32 v53, s49, v53
            v_mul_f32 v54, s49, v54
            v_cvt_pk_bf16_f32 v55, v53, v54
            v_lshlrev_b32 v53, 16, v52
            v_and_b32 v54, s23, v52
            v_lshlrev_b32 v56, 16, v55
            v_and_b32 v57, s23, v55
            v_add_f32 v53, v53, v56
            v_add_f32 v54, v54, v57
            v_cvt_pk_bf16_f32 v{58+2*mt+hh}, v53, v54
            """)
        k(f"buffer_store_dwordx2 v[{58+2*mt}:{59+2*mt}], v10, s[32:35], 0 offen offset:{32*mt}")
    k.label(done)
    k("s_endpgm")
    return kd(name, 144)


def allreduce(k, v, tmp, sbase):
    for mod in ["quad_perm:[1,0,3,2]", "quad_perm:[2,3,0,1]", "row_half_mirror", "row_mirror"]:
        k(f"""
        s_nop 1
        v_add_f32_dpp v{tmp}, v{v}, v{v} {mod} row_mask:0xf bank_mask:0xf
        v_mov_b32 v{v}, v{tmp}
        """)
    k(f"""
    s_nop 1
    v_readlane_b32 s{sbase}, v{v}, 0
    v_readlane_b32 s{sbase+1}, v{v}, 16
    v_readlane_b32 s{sbase+2}, v{v}, 32
    v_readlane_b32 s{sbase+3}, v{v}, 48
    s_nop 3
    v_mov_b32 v{v}, s{sbase}
    v_add_f32 v{v}, s{sbase+1}, v{v}
    v_add_f32 v{v}, s{sbase+2}, v{v}
    v_add_f32 v{v}, s{sbase+3}, v{v}
    """)


def unpack8(k, dst, src):
    for i in range(4):
        k(f"""
        v_lshlrev_b32 v{dst+2*i}, 16, v{src+i}
        v_and_b32 v{dst+2*i+1}, s23, v{src+i}
        """)


def round16(k, x):
    pass


def layernorm(k, x, o, t):
    k(f"v_add_f32 v{t}, v{x}, v{x+1}")
    for i in range(2, 16):
        k(f"v_add_f32 v{t}, v{t}, v{x+i}")
    allreduce(k, t, t + 1, 40)
    k(f"""
    v_mul_f32 v{t}, s24, v{t}
    """)
    for i in range(16):
        k(f"v_sub_f32 v{o+i}, v{x+i}, v{t}")
    for i in range(8, 16):
        k(f"v_mul_f32 v{o+i}, v{o+i}, v30")
    k(f"v_mul_f32 v{t+2}, v{o}, v{o}")
    for i in range(1, 16):
        k(f"v_fmac_f32 v{t+2}, v{o+i}, v{o+i}")
    allreduce(k, t + 2, t + 3, 40)
    k(f"""
    v_mul_f32 v{t+2}, s24, v{t+2}
    v_cvt_pk_bf16_f32 v{t+3}, v{t}, v{t+2}
    v_lshlrev_b32 v{t}, 16, v{t+3}             ; m_bf
    v_and_b32 v{t+2}, s23, v{t+3}              ; v_bf
    v_add_f32 v{t+2}, s25, v{t+2}              ; + eps
    v_cvt_pk_bf16_f32 v{t+2}, v{t+2}, v{t+2}
    v_lshlrev_b32 v{t+2}, 16, v{t+2}
    v_sqrt_f32 v{t+2}, v{t+2}
    s_nop 0
    v_cvt_pk_bf16_f32 v{t+2}, v{t+2}, v{t+2}
    v_lshlrev_b32 v{t+2}, 16, v{t+2}
    v_rcp_f32 v{t+4}, v{t+2}
    s_nop 0
    """)
    for i in range(0, 16, 2):
        k(f"""
        v_sub_f32 v{o+i}, v{x+i}, v{t}
        v_sub_f32 v{o+i+1}, v{x+i+1}, v{t}
        v_cvt_pk_bf16_f32 v{t+5}, v{o+i}, v{o+i+1}
        v_lshlrev_b32 v{o+i}, 16, v{t+5}
        v_and_b32 v{o+i+1}, s23, v{t+5}
        v_mul_f32 v{t+6}, v{o+i}, v{t+4}
        v_mul_f32 v{t+7}, v{o+i+1}, v{t+4}
        v_fma_f32 v{o+i}, -v{t+6}, v{t+2}, v{o+i}
        v_fma_f32 v{o+i+1}, -v{t+7}, v{t+2}, v{o+i+1}
        v_fmac_f32 v{t+6}, v{o+i}, v{t+4}
        v_fmac_f32 v{t+7}, v{o+i+1}, v{t+4}
        v_cvt_pk_bf16_f32 v{t+5}, v{t+6}, v{t+7}
        v_lshlrev_b32 v{o+i}, 16, v{t+5}
        v_and_b32 v{o+i+1}, s23, v{t+5}
        """)


def pack_store(k, x, p, voffA, voffB, srdn):
    for i in range(8):
        k(f"v_cvt_pk_bf16_f32 v{p+i}, v{x+2*i}, v{x+2*i+1}")
    k(f"""
    buffer_store_dwordx4 v[{p}:{p+3}], v{voffA}, s[{srdn}:{srdn+3}], 0 offen
    s_mov_b64 exec, s[26:27]
    buffer_store_dwordx4 v[{p+4}:{p+7}], v{voffB}, s[{srdn}:{srdn+3}], 0 offen
    s_mov_b64 exec, -1
    """)


def gen_row(k, mode):
    name = f"row{mode}_kernel"
    kernel_begin(k, name)
    done = f"row{mode}_done"
    k(f"""
    s_cmp_ge_u32 s2, 256
    s_cbranch_scc1 {done}
    s_load_dwordx2 s[4:5], s[0:1], {KA_Q}
    s_load_dwordx2 s[6:7], s[0:1], {KA_WS}
    s_load_dwordx2 s[8:9], s[0:1], {KA_OUT}
    s_mov_b32 s23, 0xffff0000
    s_mov_b32 s24, 0x3ae38e39                  ; 1/576
    s_mov_b32 s25, 0x3727c5ac                  ; 1e-5
    s_mov_b64 s[26:27], 0xff
    v_lshrrev_b32 v7, 6, v0
    v_and_b32 v2, 63, v0
    s_lshl_b32 s3, s2, 3
    v_add_u32 v1, s3, v7                       ; row
    v_mul_u32_u24 v3, {ROWB}, v1
    v_lshlrev_b32 v4, 4, v2
    v_add_u32 v3, v3, v4                       ; voffA
    v_add_u32 v4, 1024, v3                     ; voffB
    v_cmp_gt_u32 vcc, 8, v2
    v_mov_b32 v30, 0
    v_mov_b32 v31, 1.0
    s_nop 1
    v_cndmask_b32 v30, v30, v31, vcc
    s_waitcnt lgkmcnt(0)
    """)
    if mode == 0:
        srd(k, 12, 4, S * ROWB)
    elif mode == 1:
        srd(k, 12, 6, S * ROWB, WS_X1)
    else:
        srd(k, 12, 6, S * ROWB, WS_X3)
    srd(k, 16, 6, S * ROWB, WS_Y)
    srd(k, 28, 6, NSPLIT * S * D * 4, WS_P)
    if mode == 0:
        srd(k, 32, 6, S * ROWB, WS_X1)
    elif mode == 1:
        srd(k, 32, 6, S * ROWB, WS_X3)
    else:
        srd(k, 32, 8, S * ROWB)
    srd(k, 36, 6, S * ROWB, WS_XN)
    k(f"""
    v_mov_b32 v36, 0
    v_mov_b32 v37, 0
    v_mov_b32 v38, 0
    v_mov_b32 v39, 0
    v_mov_b32 v44, 0
    v_mov_b32 v45, 0
    v_mov_b32 v46, 0
    v_mov_b32 v47, 0
    buffer_load_dwordx4 v[32:35], v3, s[12:15], 0 offen
    """)
    if mode != 2:
        k(f"""
        s_lshr_b32 s3, s2, 2
        s_mul_i32 s3, s3, {D*64}
        s_and_b32 s46, s2, 3
        s_lshl_b32 s46, s46, 4
        s_add_u32 s3, s3, s46
        v_lshlrev_b32 v52, 6, v0
        v_add_u32 v52, s3, v52
        buffer_load_dwordx4 v[40:43], v52, s[16:19], 0 offen
        v_cmp_gt_u32 vcc, 64, v0
        s_and_saveexec_b64 s[44:45], vcc
        v_add_u32 v53, {512*64}, v52
        buffer_load_dwordx4 v[44:47], v53, s[16:19], 0 offen
        s_mov_b64 exec, s[44:45]
        """)
    k("s_mov_b64 exec, s[26:27]")
    k(f"buffer_load_dwordx4 v[36:39], v4, s[12:15], 0 offen")
    k("s_mov_b64 exec, -1")
    if mode != 0:
        k(f"""
        v_lshlrev_b32 v5, 1, v3
        v_add_u32 v6, 2048, v5
        """)
        for i in range(64, 128):
            k(f"v_mov_b32 v{i}, 0")
        for sk in range(NSPLIT):
            b = 64 + sk * 16
            k(f"""
            s_mov_b32 s3, {sk * S * D * 4}
            buffer_load_dwordx4 v[{b}:{b+3}], v5, s[28:31], s3 offen
            buffer_load_dwordx4 v[{b+4}:{b+7}], v5, s[28:31], s3 offen offset:16
            """)
        k("s_mov_b64 exec, s[26:27]")
        for sk in range(NSPLIT):
            b = 64 + sk * 16 + 8
            k(f"""
            s_mov_b32 s3, {sk * S * D * 4}
            buffer_load_dwordx4 v[{b}:{b+3}], v6, s[28:31], s3 offen
            buffer_load_dwordx4 v[{b+4}:{b+7}], v6, s[28:31], s3 offen offset:16
            """)
        k("s_mov_b64 exec, -1")
    k("s_waitcnt vmcnt(0)")
    if mode != 2:
        k(f"""
        v_lshlrev_b32 v52, 1, v0
        """)
        for i in range(4):
            k(f"""
            ds_write_b16 v52, v{40+i} offset:{(2*i)*1168}
            ds_write_b16_d16_hi v52, v{40+i} offset:{(2*i+1)*1168}
            """)
        k("""
        v_cmp_gt_u32 vcc, 64, v0
        s_and_saveexec_b64 s[44:45], vcc
        """)
        for i in range(4):
            k(f"""
            ds_write_b16 v52, v{44+i} offset:{(2*i)*1168+1024}
            ds_write_b16_d16_hi v52, v{44+i} offset:{(2*i+1)*1168+1024}
            """)
        k(f"""
        s_mov_b64 exec, s[44:45]
        v_mul_u32_u24 v52, 1168, v7
        v_lshl_add_u32 v52, v2, 4, v52
        v_mov_b32 v132, 0
        v_mov_b32 v133, 0
        v_mov_b32 v134, 0
        v_mov_b32 v135, 0
        s_waitcnt lgkmcnt(0)
        s_barrier
        ds_read_b128 v[128:131], v52
        s_mov_b64 exec, s[26:27]
        ds_read_b128 v[132:135], v52 offset:1024
        s_mov_b64 exec, -1
        """)
    unpack8(k, 8, 32)
    unpack8(k, 16, 36)
    if mode != 0:
        for i in range(16):
            k(f"""
            v_add_f32 v{64+i}, v{64+i}, v{80+i}
            v_add_f32 v{96+i}, v{96+i}, v{112+i}
            v_add_f32 v{64+i}, v{64+i}, v{96+i}
            """)
        for i in range(0, 16, 2):
            k(f"""
            v_cvt_pk_bf16_f32 v48, v{64+i}, v{64+i+1}
            v_lshlrev_b32 v49, 16, v48
            v_and_b32 v50, s23, v48
            v_add_f32 v49, v49, v{8+i}
            v_add_f32 v50, v50, v{8+i+1}
            v_cvt_pk_bf16_f32 v48, v49, v50
            v_lshlrev_b32 v{8+i}, 16, v48
            v_and_b32 v{8+i+1}, s23, v48
            """)
    if mode == 2:
        pack_store(k, 8, 48, 3, 4, 32)
    else:
        layernorm(k, 8, 64, 80)
        k("s_waitcnt lgkmcnt(0)")
        unpack8(k, 96, 128)
        unpack8(k, 104, 132)
        for i in range(0, 16, 2):
            k(f"""
            v_mul_f32 v49, v{64+i}, v{96+i}
            v_mul_f32 v50, v{64+i+1}, v{96+i+1}
            v_cvt_pk_bf16_f32 v48, v49, v50
            v_lshlrev_b32 v49, 16, v48
            v_and_b32 v50, s23, v48
            v_add_f32 v49, v49, v{8+i}
            v_add_f32 v50, v50, v{8+i+1}
            v_cvt_pk_bf16_f32 v48, v49, v50
            v_lshlrev_b32 v{8+i}, 16, v48
            v_and_b32 v{8+i+1}, s23, v48
            """)
        pack_store(k, 8, 48, 3, 4, 32)
        layernorm(k, 8, 64, 80)
        pack_store(k, 64, 48, 3, 4, 36)
    k.label(done)
    k("s_endpgm")
    return kd(name, 144)


def gen_gemm(k, which):
    g1 = which == 1
    name = f"gemm{which}_kernel"
    WM = 4 if g1 else 2
    WF = 3
    NW = WM * WF
    NMAT = 2 if g1 else 1
    BM = WM * 64
    XROWB = ROWB if g1 else F * 2
    WROWB = F * 2 if g1 else ROWB
    NSTAGE = 18 if g1 else 36
    XT = BM * 64
    WT = 32 * 288
    STAGE = XT + NMAT * WT
    NBUF = 4
    LDS = NBUF * STAGE
    NXI = XT // 1024
    NWI = 9
    NI = NXI + NMAT * NWI
    PER = (NI + NW - 1) // NW
    assert PER == 3
    NFT = 3 * NMAT
    BR = [12, 28]
    AR = 44
    ACC = 68
    T = 44
    kernel_begin(k, name)
    done = f"gemm{which}_done"
    k(f"""
    s_cmp_ge_u32 s2, {0 if 'empty' in EXP else 256}
    s_cbranch_scc1 {done}
    s_load_dwordx2 s[4:5], s[0:1], {KA_WS}
    s_load_dwordx2 s[6:7], s[0:1], {KA_W1 if g1 else KA_W2}
    s_load_dwordx2 s[8:9], s[0:1], {KA_W3}
    s_and_b32 s20, s2, 7                       ; xcd
    s_lshr_b32 s21, s2, 3                      ; idx 0..31
    """)
    if 'stamp' in EXP:
        k("s_memrealtime s[94:95]")
    if g1:
        k("""
        s_and_b32 s22, s21, 7                  ; mt
        s_lshr_b32 s23, s21, 3
        s_lshl_b32 s3, s20, 2
        s_add_u32 s23, s23, s3                 ; ft 0..31
        s_mov_b32 s24, 0
        """)
    else:
        k(f"""
        s_and_b32 s22, s21, 7
        s_and_b32 s3, s20, 1
        s_lshl_b32 s3, s3, 3
        s_add_u32 s22, s22, s3                 ; mt 0..15
        s_lshr_b32 s23, s21, 3                 ; nt 0..3
        s_lshr_b32 s25, s20, 1                 ; split
        s_mul_i32 s24, s25, {F // NSPLIT}      ; k offset
        """)
    k(f"""
    v_lshrrev_b32 v1, 6, v0
    v_and_b32 v2, 63, v0
    s_nop 0
    v_readfirstlane_b32 s26, v1                ; wave
    s_waitcnt lgkmcnt(0)
    """)
    if g1:
        k(f"s_add_u32 s10, s4, {WS_XN}\ns_addc_u32 s11, s5, 0")
        srd(k, 32, 4, S * F * 2, WS_H)
        XBYTES = S * ROWB
    else:
        k(f"s_add_u32 s10, s4, {WS_H}\ns_addc_u32 s11, s5, 0")
        srd(k, 32, 4, NSPLIT * S * D * 4, WS_P)
        XBYTES = S * F * 2
    WBYTES = D * F * 2
    k(f"s_mov_b32 s90, {XBYTES}\ns_mov_b32 s91, {WBYTES}\ns_mov_b32 s92, {32*WROWB}")
    for j in range(PER):
        k(f"""
        s_add_u32 s27, s26, {NW*j}
        s_min_u32 s27, s27, {NI-1}
        s_lshl_b32 s3, s27, 4
        v_lshrrev_b32 v{T}, 2, v2
        v_add_u32 v{T}, s3, v{T}                   ; row = 16i + (l>>2)
        v_lshrrev_b32 v{T+1}, 2, v{T}
        v_sub_u32 v{T+1}, 0, v{T+1}
        v_xor_b32 v{T+1}, v{T+1}, v2
        v_and_b32 v{T+1}, 3, v{T+1}
        v_lshlrev_b32 v{T+1}, 4, v{T+1}
        s_mul_i32 s3, s22, {BM}
        v_add_u32 v{T}, s3, v{T}
        s_mov_b32 s3, {XROWB}
        v_mul_lo_u32 v{T}, v{T}, s3
        v_add_u32 v{T}, v{T}, v{T+1}               ; X voff
        s_sub_u32 s28, s27, {NXI}
        s_cmp_ge_i32 s28, {NWI}
        s_cselect_b32 s29, {NWI}, 0
        s_sub_u32 s28, s28, s29
        s_lshl_b32 s3, s28, 6
        v_add_u32 v{T+1}, s3, v2                   ; pos/16 : 0..575
        v_mul_u32_u24 v{T+2}, 3641, v{T+1}
        v_lshrrev_b32 v{T+2}, 16, v{T+2}           ; slot
        v_mul_u32_u24 v{T+3}, 18, v{T+2}
        v_sub_u32 v{T+3}, v{T+1}, v{T+3}           ; chunk 0..17
        v_bfe_u32 v{T+4}, v{T+2}, 3, 1
        v_lshlrev_b32 v{T+4}, 2, v{T+4}
        v_xor_b32 v{T+2}, v{T+2}, v{T+4}           ; k row
        s_mov_b32 s3, {WROWB}
        v_mul_lo_u32 v{T+2}, v{T+2}, s3
        v_lshlrev_b32 v{T+3}, 4, v{T+3}
        v_add_u32 v{T+2}, v{T+2}, v{T+3}
        s_mul_i32 s3, s23, 288
        v_add_u32 v{T+2}, s3, v{T+2}               ; W voff
        s_cmp_ge_u32 s27, {NXI+NWI}
        s_cselect_b32 s{64+4*j}, s8, s6
        s_cselect_b32 s{65+4*j}, s9, s7
        s_lshl_b32 s3, s24, 1
        s_mul_i32 s29, s24, {WROWB}
        s_cmp_lt_u32 s27, {NXI}
        s_cselect_b64 s[36:37], -1, 0
        s_cselect_b32 s{64+4*j}, s10, s{64+4*j}
        s_cselect_b32 s{65+4*j}, s11, s{65+4*j}
        s_cselect_b32 s{66+4*j}, s90, s91
        s_mov_b32 s{67+4*j}, 0x00020000
        s_cselect_b32 s{76+j}, s3, s29
        s_cselect_b32 s{80+j}, 64, s92
        s_lshl_b32 s{84+j}, s27, 10
        s_nop 1
        v_cndmask_b32 v{3+j}, v{T+2}, v{T}, s[36:37]
        """)

    def dma(buf):
        if 'nodma' in EXP and dma.n >= 3:
            k("s_nop 0")
            return
        dma.n += 1
        for j in range(PER):
            k(f"""
            s_add_u32 m0, s{84+j}, {buf*STAGE}
            s_nop 0
            buffer_load_dwordx4 v{3+j}, s[{64+4*j}:{67+4*j}], s{76+j} offen lds
            s_add_u32 s{76+j}, s{76+j}, s{80+j}
            """)
    dma.n = 0
    for b in range(NBUF - 1):
        dma(b)
    k(f"""
    s_cmp_ge_u32 s26, {WM}
    s_cselect_b32 s28, 1, 0
    s_cmp_ge_u32 s26, {2*WM}
    s_cselect_b32 s28, 2, s28
    s_mul_i32 s3, s28, {WM}
    s_sub_u32 s27, s26, s3                     ; wm = wave % WM
    v_and_b32 v{T}, 15, v2
    v_lshrrev_b32 v{T+1}, 4, v2                ; g
    v_lshrrev_b32 v{T+2}, 2, v{T}
    v_sub_u32 v{T+2}, 0, v{T+2}
    v_xor_b32 v{T+2}, v{T+2}, v{T+1}
    v_and_b32 v{T+2}, 3, v{T+2}
    v_lshlrev_b32 v{T+2}, 4, v{T+2}
    v_lshlrev_b32 v{T+3}, 6, v{T}              ; row*64
    v_add_u32 v{T+2}, v{T+2}, v{T+3}
    s_lshl_b32 s3, s27, 12                     ; wm*64*64
    v_add_u32 v6, s3, v{T+2}
    v_bfe_u32 v{T+2}, v2, 2, 2                 ; r
    v_lshl_add_u32 v{T+2}, v{T+1}, 3, v{T+2}   ; 8g + r
    v_and_b32 v{T+3}, 1, v{T+1}
    v_lshlrev_b32 v{T+3}, 2, v{T+3}            ; 4*(g&1)
    v_add_u32 v{T+4}, v{T+2}, v{T+3}           ; slot h'=0
    v_xor_b32 v{T+3}, 4, v{T+3}
    v_add_u32 v{T+5}, v{T+2}, v{T+3}           ; slot h'=1
    v_mul_u32_u24 v{T+4}, 288, v{T+4}
    v_mul_u32_u24 v{T+5}, 288, v{T+5}
    v_and_b32 v{T+3}, 3, v2
    v_lshlrev_b32 v{T+3}, 3, v{T+3}
    s_mul_i32 s3, s28, 96
    s_add_u32 s3, s3, {XT}
    v_add3_u32 v7, v{T+4}, v{T+3}, s3
    v_add3_u32 v8, v{T+5}, v{T+3}, s3          ; h'=1
    v_add_u32 v9, {2*STAGE}, v6
    v_add_u32 v10, {2*STAGE}, v7
    v_add_u32 v11, {2*STAGE}, v8
    """)
    for i in range(NFT * 16):
        k(f"v_mov_b32 v{ACC+i}, 0")

    def read_b(buf, par):
        xa = 6 + 3 * (buf // 2)
        for mt in range(4):
            k(f"ds_read_b128 v[{BR[par]+4*mt}:{BR[par]+3+4*mt}], v{xa} offset:{(buf%2)*STAGE + mt*1024}")

    def read_a(buf, ft):
        xa = 6 + 3 * (buf // 2)
        mat, f3 = divmod(ft, 3)
        off = (buf % 2) * STAGE + mat * WT + f3 * 32
        k(f"""
        ds_read_b64_tr_b16 v[{AR+4*ft}:{AR+1+4*ft}], v{xa+1} offset:{off}
        ds_read_b64_tr_b16 v[{AR+2+4*ft}:{AR+3+4*ft}], v{xa+2} offset:{off}
        """)

    def dma1(buf, j):
        if 'nodma' in EXP:
            return
        k(f"""
        s_add_u32 m0, s{84+j}, {buf*STAGE}
        s_nop 0
        buffer_load_dwordx4 v{3+j}, s[{64+4*j}:{67+4*j}], s{76+j} offen lds
        s_add_u32 s{76+j}, s{76+j}, s{80+j}
        """)

    def stage(st, last_dma, has_next, infl):
        b = st % NBUF
        par = st % 2
        if has_next:
            k(f"s_waitcnt vmcnt({infl*PER})\ns_barrier")
        for ft in range(NFT):
            if has_next:
                k(f"s_waitcnt lgkmcnt({2*NFT-2 if ft == 0 else 2*NFT+2})")
            elif ft == 0:
                k("s_waitcnt lgkmcnt(0)")
            for mt in range(4):
                a = ACC + (ft * 4 + mt) * 4
                if 'nomfma' in EXP and not (ft == NFT - 1 and mt == 3):
                    continue
                k(f"v_mfma_f32_16x16x32_bf16 v[{a}:{a+3}], v[{AR+4*ft}:{AR+3+4*ft}], v[{BR[par]+4*mt}:{BR[par]+3+4*mt}], v[{a}:{a+3}]")
            if has_next:
                read_a((b + 1) % NBUF, ft)
                if ft == 0:
                    read_b((b + 1) % NBUF, 1 - par)
                if last_dma is not None:
                    if NFT == 6 and ft in (1, 2, 3):
                        dma1(last_dma, ft - 1)
                    if NFT == 3:
                        dma1(last_dma, ft)

    k(f"s_waitcnt vmcnt({2*PER})\ns_barrier")
    if 'stamp' in EXP:
        k("s_memrealtime s[96:97]")
    read_a(0, 0)
    read_b(0, 0)
    for ft in range(1, NFT):
        read_a(0, ft)
    nloop = (NSTAGE - 3) // NBUF
    if 'noloop' in EXP:
        nloop = 1
        NSTAGE = 6
    k(f"s_mov_b32 s38, {nloop}")
    lp = f"g{which}_loop"
    k.label(lp)
    for b in range(NBUF):
        stage(b, (b + 3) % NBUF, True, 1)
    k(f"s_sub_u32 s38, s38, 1\ns_cmp_lg_u32 s38, 0\ns_cbranch_scc1 {lp}")
    for st in range(nloop * NBUF, NSTAGE):
        has_next = st + 1 < NSTAGE
        infl = 1 if st + 2 < NSTAGE else 0
        stage(st, (st + 3) % NBUF if st + 3 < NSTAGE else None, has_next, infl)
    k("s_nop 7\ns_nop 7")
    if 'stamp' in EXP:
        k("s_memrealtime s[98:99]")
    E = 12
    if g1:
        k(f"""
        v_and_b32 v3, 15, v2
        v_lshrrev_b32 v4, 4, v2
        s_lshl_b32 s3, s22, 8
        v_add_u32 v3, s3, v3
        s_lshl_b32 s3, s27, 6
        v_add_u32 v3, s3, v3
        s_mov_b32 s3, {F*2}
        v_mul_lo_u32 v3, v3, s3
        v_lshlrev_b32 v4, 3, v4
        v_add_u32 v3, v3, v4
        s_mul_i32 s3, s23, 288
        v_add_u32 v3, s3, v3
        s_mul_i32 s3, s28, 96
        v_add_u32 v3, s3, v3
        s_mov_b32 s23, 0xffff0000
        s_mov_b32 s24, 0xbfb8aa3b               ; -log2(e)
        """)
        for f3 in range(3):
            for mt in range(4):
                ga = ACC + (f3 * 4 + mt) * 4
                ua = ACC + ((3 + f3) * 4 + mt) * 4
                o = E + 10 + 2 * (mt % 2)
                for hh in range(2):
                    if 'noepi' in EXP:
                        k(f"v_cvt_pk_bf16_f32 v{o+hh}, v{ga+2*hh}, v{ua+2*hh+1}")
                        continue
                    k(f"""
                    v_cvt_pk_bf16_f32 v{E}, v{ga+2*hh}, v{ga+2*hh+1}
                    v_cvt_pk_bf16_f32 v{E+1}, v{ua+2*hh}, v{ua+2*hh+1}
                    v_lshlrev_b32 v{E+2}, 16, v{E}
                    v_and_b32 v{E+3}, s23, v{E}
                    v_mul_f32 v{E+4}, s24, v{E+2}
                    v_mul_f32 v{E+5}, s24, v{E+3}
                    v_exp_f32 v{E+4}, v{E+4}
                    v_exp_f32 v{E+5}, v{E+5}
                    v_lshlrev_b32 v{E+6}, 16, v{E+1}
                    v_add_f32 v{E+4}, 1.0, v{E+4}
                    v_add_f32 v{E+5}, 1.0, v{E+5}
                    v_rcp_f32 v{E+4}, v{E+4}
                    v_rcp_f32 v{E+5}, v{E+5}
                    v_and_b32 v{E+7}, s23, v{E+1}
                    v_mul_f32 v{E+2}, v{E+2}, v{E+4}
                    v_mul_f32 v{E+3}, v{E+3}, v{E+5}
                    v_cvt_pk_bf16_f32 v{E}, v{E+2}, v{E+3}
                    v_lshlrev_b32 v{E+2}, 16, v{E}
                    v_and_b32 v{E+3}, s23, v{E}
                    v_mul_f32 v{E+2}, v{E+2}, v{E+6}
                    v_mul_f32 v{E+3}, v{E+3}, v{E+7}
                    v_cvt_pk_bf16_f32 v{o+hh}, v{E+2}, v{E+3}
                    """)
                if 'nostore' in EXP and not (f3 == 2 and mt == 3):
                    continue
                k(f"""
                v_add_u32 v4, {mt*16*F*2}, v3
                buffer_store_dwordx2 v[{o}:{o+1}], v4, s[32:35], 0 offen offset:{f3*32}
                """)
    else:
        k(f"""
        v_and_b32 v3, 15, v2
        v_lshrrev_b32 v4, 4, v2
        s_lshl_b32 s3, s22, 7
        v_add_u32 v3, s3, v3
        s_lshl_b32 s3, s27, 6
        v_add_u32 v3, s3, v3
        v_mul_u32_u24 v3, {D*4}, v3
        v_lshlrev_b32 v4, 4, v4
        v_add_u32 v3, v3, v4
        s_mul_i32 s3, s23, 576
        v_add_u32 v3, s3, v3
        s_mul_i32 s3, s28, 192
        v_add_u32 v3, s3, v3
        s_mul_i32 s3, s25, {S*D*4}
        """)
        for f3 in range(3):
            for mt in range(4):
                a = ACC + (f3 * 4 + mt) * 4
                if 'nostore' in EXP and not (f3 == 2 and mt == 3):
                    continue
                k(f"""
                v_add_u32 v4, {mt*16*D*4}, v3
                buffer_store_dwordx4 v[{a}:{a+3}], v4, s[32:35], s3 offen offset:{f3*64}
                """)
    if 'stamp' in EXP:
        k(f"""
        s_waitcnt vmcnt(0)
        s_memrealtime s[100:101]
        s_waitcnt lgkmcnt(0)
        s_cmp_lg_u32 s26, 0
        s_cbranch_scc1 {done}
        s_add_u32 s60, s4, {0x6000000 + which * 0x10000}
        s_addc_u32 s61, s5, 0
        s_mov_b32 s62, 0x10000
        s_mov_b32 s63, 0x00020000
        v_mov_b32 v12, s94
        v_mov_b32 v13, s96
        v_mov_b32 v14, s98
        v_mov_b32 v15, s100
        s_lshl_b32 s3, s2, 4
        v_mov_b32 v16, s3
        s_mov_b64 exec, 1
        buffer_store_dwordx4 v[12:15], v16, s[60:63], 0 offen
        """)
    k.label(done)
    k("s_endpgm")
    return kd(name, ACC + NFT * 16), NW * 64, LDS


def main():
    k = K()
    kds = []
    kds.append(gen_pre(k))
    kds.append(gen_conv(k))
    for m in range(3):
        kds.append(gen_row(k, m))
    kd1, t1, lds1 = gen_gemm(k, 1)
    kd2, t2, lds2 = gen_gemm(k, 2)
    kds += [kd1, kd2]
    launches = [
        ("pre_kernel", 288, 512, PRE_LDS),
        ("conv_kernel", 576, 256, CONV_LDS),
        ("row0_kernel", 256, 512, 9344),
        ("gemm1_kernel", 256, t1, lds1),
        ("gemm2_kernel", 256, t2, lds2),
        ("row1_kernel", 256, 512, 9344),
        ("gemm1_kernel", 256, t1, lds1),
        ("gemm2_kernel", 256, t2, lds2),
        ("row2_kernel", 256, 512, 0),
    ]
    n = int(sys.argv[1]) if len(sys.argv) > 1 else len(launches)
    out = HEADER
    for (nm, g, b, l) in launches[:n]:
        out += f"; @launch kernel={nm} grid=({g},1,1) block=({b},1,1) lds={l}\n"
    out += '.amdgcn_target "amdgcn-amd-amdhsa--gfx950"\n.text\n'
    out += k.text()
    out += '.section .rodata,"a"\n' + "".join(kds)
    open(f"cdna_kernels/{NAME}.s", "w").write(out)


if __name__ == "__main__":
    main()
```

```python
import sys, os
EXP = os.environ.get('GEXP', '')

NAME = "interleave_layers__ssm_conv_h3__glu_gated_swiglu__prompt"
S, D, F = 2048, 576, 4608
KA_Q, KA_K, KA_V, KA_SH, KA_SK, KA_SD, KA_BX, KA_W1, KA_W3, KA_W2, KA_OUT, KA_DBG, KA_WS = [8 * i for i in range(13)]
WS_Y = 0
WS_X1 = 0x400000
WS_XN = 0x800000
WS_X3 = 0xC00000
WS_H = 0x1000000
WS_P = 0x3000000
ROWB = D * 2
NSPLIT = 4

HEADER = open(f"cdna_kernels/{NAME}.s.ref").read().split("; @launch")[0]


class K:
    def __init__(self):
        self.lines = []
        self.lbl = 0

    def __call__(self, s):
        for l in s.strip("\n").split("\n"):
            self.lines.append("    " + l.strip())

    def raw(self, s):
        self.lines.append(s)

    def label(self, name):
        self.lines.append(name + ":")

    def newlabel(self, p="L"):
        self.lbl += 1
        return f"{p}_{self.lbl}"

    def text(self):
        return "\n".join(self.lines) + "\n"


def srd(k, d, ptr_lo, nbytes, off=0):
    if off:
        k(f"s_add_u32 s{d}, s{ptr_lo}, {off}")
        k(f"s_addc_u32 s{d+1}, s{ptr_lo+1}, 0")
    else:
        k(f"s_mov_b32 s{d}, s{ptr_lo}")
        k(f"s_mov_b32 s{d+1}, s{ptr_lo+1}")
    k(f"s_mov_b32 s{d+2}, {nbytes}")
    k(f"s_mov_b32 s{d+3}, 0x00020000")


def kernel_begin(k, name):
    k.raw(f".globl {name}")
    k.raw(".p2align 8")
    k.raw(f".type {name},@function")
    k.label(name)


def kd(name, vgpr, sgpr=102, accum=None):
    if accum is None:
        accum = (vgpr + 3) // 4 * 4
    return f""".p2align 6
.amdhsa_kernel {name}
  .amdhsa_next_free_vgpr {vgpr}
  .amdhsa_next_free_sgpr {sgpr}
  .amdhsa_accum_offset {accum}
  .amdhsa_group_segment_fixed_size 0
  .amdhsa_kernarg_size 104
  .amdhsa_user_sgpr_count 2
  .amdhsa_user_sgpr_kernarg_segment_ptr 1
  .amdhsa_system_sgpr_workgroup_id_x 1
.end_amdhsa_kernel
"""


WS_KVT = 0x5000000
PRE_LDS = 64 * 144


def gen_pre(k):
    name = "pre_kernel"
    kernel_begin(k, name)
    done = "pre_done"
    k(f"""
    s_cmp_ge_u32 s2, 288
    s_cbranch_scc1 {done}
    s_load_dwordx4 s[4:7], s[0:1], {KA_K}
    s_load_dwordx2 s[8:9], s[0:1], {KA_SH}
    s_load_dwordx2 s[14:15], s[0:1], {KA_WS}
    s_mul_hi_u32 s20, s2, {(1 << 32) // 9 + 1}  ; rt
    s_mul_i32 s3, s20, 9
    s_sub_u32 s21, s2, s3                      ; ct
    s_mov_b32 s23, 0xffff0000
    v_lshrrev_b32 v1, 3, v0
    v_and_b32 v2, 7, v0                        ; chunk
    s_lshl_b32 s3, s20, 6
    v_add_u32 v3, s3, v1                       ; s
    v_mul_u32_u24 v3, {ROWB}, v3
    s_lshl_b32 s3, s21, 7
    v_lshl_add_u32 v4, v2, 4, s3
    v_add_u32 v3, v3, v4                       ; voff
    v_lshlrev_b32 v4, 2, v4
    s_waitcnt lgkmcnt(0)
    """)
    srd(k, 24, 4, S * ROWB)
    srd(k, 28, 6, S * ROWB)
    srd(k, 32, 8, D * 8)
    srd(k, 36, 14, D * S * 2, WS_KVT)
    k(f"""
    v_subrev_u32 v5, {ROWB}, v3
    v_subrev_u32 v6, {2*ROWB}, v3
    v_subrev_u32 v7, {3*ROWB}, v3
    buffer_load_dwordx4 v[8:11], v7, s[24:27], 0 offen
    buffer_load_dwordx4 v[12:15], v6, s[24:27], 0 offen
    buffer_load_dwordx4 v[16:19], v5, s[24:27], 0 offen
    buffer_load_dwordx4 v[20:23], v3, s[24:27], 0 offen
    buffer_load_dwordx4 v[24:27], v3, s[28:31], 0 offen
    buffer_load_dwordx4 v[40:43], v4, s[32:35], 0 offen
    buffer_load_dwordx4 v[44:47], v4, s[32:35], 0 offen offset:16
    buffer_load_dwordx4 v[48:51], v4, s[32:35], 0 offen offset:32
    buffer_load_dwordx4 v[52:55], v4, s[32:35], 0 offen offset:48
    v_mul_u32_u24 v56, {8*144}, v2
    v_lshl_add_u32 v56, v1, 1, v56
    s_waitcnt vmcnt(0)
    """)
    for p in range(4):
        for t in range(4):
            src = 8 + 4 * t + p
            tap = 3 - t
            ra = 40 + (2 * p) * 2 + tap // 2
            rb = 40 + (2 * p + 1) * 2 + tap // 2
            opa = f"v_lshlrev_b32 v34, 16, v{ra}" if tap % 2 == 0 else f"v_and_b32 v34, s23, v{ra}"
            opb = f"v_lshlrev_b32 v35, 16, v{rb}" if tap % 2 == 0 else f"v_and_b32 v35, s23, v{rb}"
            k(f"""
            {opa}
            {opb}
            v_lshlrev_b32 v28, 16, v{src}
            v_and_b32 v29, s23, v{src}
            v_mul_f32 v28, v34, v28
            v_mul_f32 v29, v35, v29
            """)
            if t == 0:
                k("v_cvt_pk_bf16_f32 v30, v28, v29")
            else:
                k(f"""
                v_cvt_pk_bf16_f32 v31, v28, v29
                v_lshlrev_b32 v28, 16, v30
                v_and_b32 v29, s23, v30
                v_lshlrev_b32 v32, 16, v31
                v_and_b32 v33, s23, v31
                v_add_f32 v28, v28, v32
                v_add_f32 v29, v29, v33
                v_cvt_pk_bf16_f32 v30, v28, v29
                """)
        k(f"""
        v_lshlrev_b32 v28, 16, v30
        v_and_b32 v29, s23, v30
        v_lshlrev_b32 v32, 16, v{24+p}
        v_and_b32 v33, s23, v{24+p}
        v_mul_f32 v28, v28, v32
        v_mul_f32 v29, v29, v33
        v_cvt_pk_bf16_f32 v{36+p}, v28, v29
        ds_write_b16 v56, v{36+p} offset:{(2*p)*144}
        ds_write_b16_d16_hi v56, v{36+p} offset:{(2*p+1)*144}
        """)
    k(f"""
    s_waitcnt lgkmcnt(0)
    s_barrier
    v_mul_u32_u24 v4, 144, v1
    v_lshl_add_u32 v4, v2, 4, v4
    ds_read_b128 v[8:11], v4
    s_lshl_b32 s3, s21, 6
    v_add_u32 v5, s3, v1                       ; d
    v_lshlrev_b32 v5, 12, v5
    v_lshl_add_u32 v5, v2, 4, v5
    s_lshl_b32 s3, s20, 7
    v_add_u32 v5, s3, v5
    s_waitcnt lgkmcnt(0)
    buffer_store_dwordx4 v[8:11], v5, s[36:39], 0 offen
    """)
    k.label(done)
    k("s_endpgm")
    return kd(name, 64)


HC_COPY = 4288
HC_BASE = 5120
RED_BASE = HC_BASE + 4 * HC_COPY
CONV_LDS = RED_BASE + 32768


def gen_conv(k):
    name = "conv_kernel"
    kernel_begin(k, name)
    done = "conv_done"
    k(f"""
    s_cmp_ge_u32 s2, {D}
    s_cbranch_scc1 {done}
    s_load_dwordx4 s[8:11], s[0:1], {KA_SK}
    s_load_dwordx2 s[14:15], s[0:1], {KA_WS}
    s_mov_b32 s23, 0xffff0000
    s_and_b32 s3, s2, 0xfffe
    s_lshl_b32 s3, s3, 1
    s_waitcnt lgkmcnt(0)
    s_add_u32 s10, s10, s3
    s_addc_u32 s11, s11, 0
    s_load_dword s49, s[10:11], 0
    """)
    srd(k, 24, 14, D * S * 2, WS_KVT)
    srd(k, 28, 8, D * S * 2)
    srd(k, 32, 14, S * ROWB, WS_Y)
    k(f"""
    s_lshl_b32 s47, s2, 12                     ; d*4096
    v_lshlrev_b32 v1, 4, v0                    ; 16*t
    v_add_u32 v2, s47, v1
    v_subrev_u32 v3, 8, v2
    buffer_load_dwordx4 v[4:7], v2, s[24:27], 0 offen      ; u chunk
    buffer_load_dwordx2 v[16:17], v3, s[28:31], 0 offen
    buffer_load_dwordx4 v[18:21], v2, s[28:31], 0 offen
    v_mov_b32 v8, 0
    v_mov_b32 v9, 0
    v_mov_b32 v10, 0
    v_mov_b32 v11, 0
    v_cmp_eq_u32 s[50:51], 0, v0
    v_cmp_gt_u32 vcc, 64, v0
    s_and_saveexec_b64 s[52:53], vcc
    ds_write_b128 v1, v[8:11]                  ; u pad (1024 B)
    v_and_b32 v12, 15, v0
    v_lshrrev_b32 v13, 2, v12
    v_mul_u32_u24 v13, {HC_COPY}, v13
    v_and_b32 v12, 3, v12
    v_lshl_add_u32 v13, v12, 4, v13
    ds_write_b128 v13, v[8:11] offset:{HC_BASE}
    s_mov_b64 exec, s[52:53]
    s_waitcnt vmcnt(0)
    ds_write_b128 v1, v[4:7] offset:1024
    v_cndmask_b32 v16, v16, 0, s[50:51]
    v_cndmask_b32 v17, v17, 0, s[50:51]
    v_alignbit_b32 v22, v17, v16, 16
    v_alignbit_b32 v23, v18, v17, 16
    v_alignbit_b32 v24, v19, v18, 16
    v_alignbit_b32 v25, v20, v19, 16
    v_alignbit_b32 v26, v21, v20, 16
    v_mov_b32 v28, v17
    v_mov_b32 v29, v18
    v_mov_b32 v30, v19
    v_mov_b32 v31, v20
    v_mov_b32 v32, v23
    v_mov_b32 v33, v24
    v_mov_b32 v34, v25
    v_mov_b32 v35, v26
    ds_write_b128 v1, v[18:21] offset:{HC_BASE+64}
    ds_write_b128 v1, v[32:35] offset:{HC_BASE+64+HC_COPY}
    ds_write_b128 v1, v[28:31] offset:{HC_BASE+64+2*HC_COPY}
    ds_write_b128 v1, v[22:25] offset:{HC_BASE+64+3*HC_COPY}
    ; addresses
    v_lshrrev_b32 v1, 6, v0
    v_and_b32 v2, 63, v0
    s_nop 0
    v_readfirstlane_b32 s22, v1                ; wave
    s_nop 3
    v_lshrrev_b32 v4, 4, v2                    ; g
    v_and_b32 v5, 3, v2                        ; c
    v_bfe_u32 v6, v2, 2, 2                     ; r
    v_mul_u32_u24 v6, {HC_COPY}, v6
    v_lshlrev_b32 v7, 4, v4
    v_sub_u32 v6, v6, v7
    v_lshlrev_b32 v7, 3, v5
    v_add_u32 v6, v6, v7
    s_lshl_b32 s3, s22, 6                      ; w*64 bytes
    s_add_u32 s3, s3, {HC_BASE + 64 - 8}
    v_add_u32 v12, s3, v6                      ; A base (c' = w)
    v_and_b32 v7, 15, v2                       ; jj
    v_lshlrev_b32 v8, 6, v7
    v_lshl_add_u32 v8, v4, 4, v8               ; 64jj + 16g
    s_lshl_b32 s3, s22, 6
    s_sub_u32 s3, 64, s3
    v_add_u32 v13, s3, v8
    v_lshlrev_b32 v9, 6, v7
    v_lshl_add_u32 v9, v4, 3, v9
    s_lshl_b32 s3, s22, 10
    s_add_u32 s3, s3, 1024
    v_add_u32 v9, s3, v9
    s_lshl_b32 s3, s22, 4
    v_add_u32 v10, s3, v7
    v_mul_u32_u24 v10, {D*64}, v10
    v_lshl_add_u32 v10, v4, 3, v10
    s_lshl_b32 s3, s2, 6
    v_add_u32 v10, s3, v10
    v_lshlrev_b32 v11, 4, v2
    s_lshl_b32 s3, s22, 13
    s_add_u32 s3, s3, {RED_BASE}
    v_add_u32 v14, s3, v11
    s_lshl_b32 s3, s22, 11
    s_add_u32 s3, s3, {RED_BASE}
    v_add_u32 v15, s3, v11
    """)
    for i in range(32):
        k(f"v_mov_b32 v{16+i}, 0")
    k("s_waitcnt lgkmcnt(0)\ns_barrier")
    FR = 48
    for t in range(4):
        nt = 4 - t
        per = 8 + 4 * nt
        for i in range(4):
            base = FR + i * 24
            aoff = (16 * t + 4 * i) * 64
            k(f"""
            ds_read_b64_tr_b16 v[{base}:{base+1}], v12 offset:{8 + aoff}
            ds_read_b64_tr_b16 v[{base+2}:{base+3}], v12 offset:{0 + aoff}
            ds_read_b64_tr_b16 v[{base+4}:{base+5}], v12 offset:{8 + 32 + aoff}
            ds_read_b64_tr_b16 v[{base+6}:{base+7}], v12 offset:{0 + 32 + aoff}
            """)
            for j in range(t, 4):
                bo = 960 + 1024 * j - 1024 * t - 256 * i
                r = base + 8 + 4 * (j - t)
                k(f"ds_read_b128 v[{r}:{r+3}], v13 offset:{bo}")
        for i in range(4):
            base = FR + i * 24
            rem = (3 - i) * (4 + nt)
            k(f"s_waitcnt lgkmcnt({min(rem, 15)})")
            for j in range(t, 4):
                r = base + 8 + 4 * (j - t)
                a = 16 + 8 * j
                k(f"""
                v_mfma_f32_16x16x32_bf16 v[{a}:{a+3}], v[{base}:{base+3}], v[{r}:{r+3}], v[{a}:{a+3}]
                v_mfma_f32_16x16x32_bf16 v[{a+4}:{a+7}], v[{base+4}:{base+7}], v[{r}:{r+3}], v[{a+4}:{a+7}]
                """)
    k("s_nop 7\ns_nop 7")
    for x in range(8):
        k(f"ds_write_b128 v14, v[{16+4*x}:{19+4*x}] offset:{x*1024}")
    k(f"""
    ds_read_b64 v[88:89], v9
    ds_read_b64 v[90:91], v9 offset:32
    s_and_b32 s3, s2, 1
    s_lshl_b32 s46, s49, 16
    s_and_b32 s49, s49, 0xffff0000
    s_cmp_eq_u32 s3, 0
    s_cselect_b32 s49, s46, s49
    s_waitcnt lgkmcnt(0)
    s_barrier
    """)
    for w in range(4):
        for mt in range(2):
            r = 48 + w * 8 + mt * 4
            k(f"ds_read_b128 v[{r}:{r+3}], v15 offset:{w*8192 + mt*1024}")
    k("s_waitcnt lgkmcnt(0)")
    for x in range(8):
        k(f"""
        v_add_f32 v{48+x}, v{48+x}, v{56+x}
        v_add_f32 v{64+x}, v{64+x}, v{72+x}
        v_add_f32 v{40+x}, v{48+x}, v{64+x}
        """)
    for mt in range(2):
        a = 40 + 4 * mt
        kvr = 88 + 2 * mt
        for hh in range(2):
            k(f"""
            v_cvt_pk_bf16_f32 v52, v{a+2*hh}, v{a+2*hh+1}
            v_lshlrev_b32 v53, 16, v{kvr+hh}
            v_and_b32 v54, s23, v{kvr+hh}
            v_mul_f32 v53, s49, v53
            v_mul_f32 v54, s49, v54
            v_cvt_pk_bf16_f32 v55, v53, v54
            v_lshlrev_b32 v53, 16, v52
            v_and_b32 v54, s23, v52
            v_lshlrev_b32 v56, 16, v55
            v_and_b32 v57, s23, v55
            v_add_f32 v53, v53, v56
            v_add_f32 v54, v54, v57
            v_cvt_pk_bf16_f32 v{58+2*mt+hh}, v53, v54
            """)
        k(f"buffer_store_dwordx2 v[{58+2*mt}:{59+2*mt}], v10, s[32:35], 0 offen offset:{32*mt}")
    k.label(done)
    k("s_endpgm")
    return kd(name, 144)


def allreduce(k, v, tmp, sbase):
    for mod in ["quad_perm:[1,0,3,2]", "quad_perm:[2,3,0,1]", "row_half_mirror", "row_mirror"]:
        k(f"""
        s_nop 1
        v_add_f32_dpp v{tmp}, v{v}, v{v} {mod} row_mask:0xf bank_mask:0xf
        v_mov_b32 v{v}, v{tmp}
        """)
    k(f"""
    s_nop 1
    v_readlane_b32 s{sbase}, v{v}, 0
    v_readlane_b32 s{sbase+1}, v{v}, 16
    v_readlane_b32 s{sbase+2}, v{v}, 32
    v_readlane_b32 s{sbase+3}, v{v}, 48
    s_nop 3
    v_mov_b32 v{v}, s{sbase}
    v_add_f32 v{v}, s{sbase+1}, v{v}
    v_add_f32 v{v}, s{sbase+2}, v{v}
    v_add_f32 v{v}, s{sbase+3}, v{v}
    """)


def unpack8(k, dst, src):
    for i in range(4):
        k(f"""
        v_lshlrev_b32 v{dst+2*i}, 16, v{src+i}
        v_and_b32 v{dst+2*i+1}, s23, v{src+i}
        """)


def round16(k, x):
    pass


def layernorm(k, x, o, t):
    k(f"v_add_f32 v{t}, v{x}, v{x+1}")
    for i in range(2, 16):
        k(f"v_add_f32 v{t}, v{t}, v{x+i}")
    allreduce(k, t, t + 1, 40)
    k(f"""
    v_mul_f32 v{t}, s24, v{t}
    """)
    for i in range(16):
        k(f"v_sub_f32 v{o+i}, v{x+i}, v{t}")
    for i in range(8, 16):
        k(f"v_mul_f32 v{o+i}, v{o+i}, v30")
    k(f"v_mul_f32 v{t+2}, v{o}, v{o}")
    for i in range(1, 16):
        k(f"v_fmac_f32 v{t+2}, v{o+i}, v{o+i}")
    allreduce(k, t + 2, t + 3, 40)
    k(f"""
    v_mul_f32 v{t+2}, s24, v{t+2}
    v_cvt_pk_bf16_f32 v{t+3}, v{t}, v{t+2}
    v_lshlrev_b32 v{t}, 16, v{t+3}             ; m_bf
    v_and_b32 v{t+2}, s23, v{t+3}              ; v_bf
    v_add_f32 v{t+2}, s25, v{t+2}              ; + eps
    v_cvt_pk_bf16_f32 v{t+2}, v{t+2}, v{t+2}
    v_lshlrev_b32 v{t+2}, 16, v{t+2}
    v_sqrt_f32 v{t+2}, v{t+2}
    s_nop 0
    v_cvt_pk_bf16_f32 v{t+2}, v{t+2}, v{t+2}
    v_lshlrev_b32 v{t+2}, 16, v{t+2}
    v_rcp_f32 v{t+4}, v{t+2}
    s_nop 0
    """)
    for i in range(0, 16, 2):
        k(f"""
        v_sub_f32 v{o+i}, v{x+i}, v{t}
        v_sub_f32 v{o+i+1}, v{x+i+1}, v{t}
        v_cvt_pk_bf16_f32 v{t+5}, v{o+i}, v{o+i+1}
        v_lshlrev_b32 v{o+i}, 16, v{t+5}
        v_and_b32 v{o+i+1}, s23, v{t+5}
        v_mul_f32 v{t+6}, v{o+i}, v{t+4}
        v_mul_f32 v{t+7}, v{o+i+1}, v{t+4}
        v_fma_f32 v{o+i}, -v{t+6}, v{t+2}, v{o+i}
        v_fma_f32 v{o+i+1}, -v{t+7}, v{t+2}, v{o+i+1}
        v_fmac_f32 v{t+6}, v{o+i}, v{t+4}
        v_fmac_f32 v{t+7}, v{o+i+1}, v{t+4}
        v_cvt_pk_bf16_f32 v{t+5}, v{t+6}, v{t+7}
        v_lshlrev_b32 v{o+i}, 16, v{t+5}
        v_and_b32 v{o+i+1}, s23, v{t+5}
        """)


def pack_store(k, x, p, voffA, voffB, srdn):
    for i in range(8):
        k(f"v_cvt_pk_bf16_f32 v{p+i}, v{x+2*i}, v{x+2*i+1}")
    k(f"""
    buffer_store_dwordx4 v[{p}:{p+3}], v{voffA}, s[{srdn}:{srdn+3}], 0 offen
    s_mov_b64 exec, s[26:27]
    buffer_store_dwordx4 v[{p+4}:{p+7}], v{voffB}, s[{srdn}:{srdn+3}], 0 offen
    s_mov_b64 exec, -1
    """)


def gen_row(k, mode):
    name = f"row{mode}_kernel"
    kernel_begin(k, name)
    done = f"row{mode}_done"
    k(f"""
    s_cmp_ge_u32 s2, 256
    s_cbranch_scc1 {done}
    s_load_dwordx2 s[4:5], s[0:1], {KA_Q}
    s_load_dwordx2 s[6:7], s[0:1], {KA_WS}
    s_load_dwordx2 s[8:9], s[0:1], {KA_OUT}
    s_mov_b32 s23, 0xffff0000
    s_mov_b32 s24, 0x3ae38e39                  ; 1/576
    s_mov_b32 s25, 0x3727c5ac                  ; 1e-5
    s_mov_b64 s[26:27], 0xff
    v_lshrrev_b32 v7, 6, v0
    v_and_b32 v2, 63, v0
    s_lshl_b32 s3, s2, 3
    v_add_u32 v1, s3, v7                       ; row
    v_mul_u32_u24 v3, {ROWB}, v1
    v_lshlrev_b32 v4, 4, v2
    v_add_u32 v3, v3, v4                       ; voffA
    v_add_u32 v4, 1024, v3                     ; voffB
    v_cmp_gt_u32 vcc, 8, v2
    v_mov_b32 v30, 0
    v_mov_b32 v31, 1.0
    s_nop 1
    v_cndmask_b32 v30, v30, v31, vcc
    s_waitcnt lgkmcnt(0)
    """)
    if mode == 0:
        srd(k, 12, 4, S * ROWB)
    elif mode == 1:
        srd(k, 12, 6, S * ROWB, WS_X1)
    else:
        srd(k, 12, 6, S * ROWB, WS_X3)
    srd(k, 16, 6, S * ROWB, WS_Y)
    srd(k, 28, 6, NSPLIT * S * D * 4, WS_P)
    if mode == 0:
        srd(k, 32, 6, S * ROWB, WS_X1)
    elif mode == 1:
        srd(k, 32, 6, S * ROWB, WS_X3)
    else:
        srd(k, 32, 8, S * ROWB)
    srd(k, 36, 6, S * ROWB, WS_XN)
    k(f"""
    v_mov_b32 v36, 0
    v_mov_b32 v37, 0
    v_mov_b32 v38, 0
    v_mov_b32 v39, 0
    v_mov_b32 v44, 0
    v_mov_b32 v45, 0
    v_mov_b32 v46, 0
    v_mov_b32 v47, 0
    buffer_load_dwordx4 v[32:35], v3, s[12:15], 0 offen
    """)
    if mode != 2:
        k(f"""
        s_lshr_b32 s3, s2, 2
        s_mul_i32 s3, s3, {D*64}
        s_and_b32 s46, s2, 3
        s_lshl_b32 s46, s46, 4
        s_add_u32 s3, s3, s46
        v_lshlrev_b32 v52, 6, v0
        v_add_u32 v52, s3, v52
        buffer_load_dwordx4 v[40:43], v52, s[16:19], 0 offen
        v_cmp_gt_u32 vcc, 64, v0
        s_and_saveexec_b64 s[44:45], vcc
        v_add_u32 v53, {512*64}, v52
        buffer_load_dwordx4 v[44:47], v53, s[16:19], 0 offen
        s_mov_b64 exec, s[44:45]
        """)
    k("s_mov_b64 exec, s[26:27]")
    k(f"buffer_load_dwordx4 v[36:39], v4, s[12:15], 0 offen")
    k("s_mov_b64 exec, -1")
    if mode != 0:
        k(f"""
        v_lshlrev_b32 v5, 1, v3
        v_add_u32 v6, 2048, v5
        """)
        for i in range(64, 128):
            k(f"v_mov_b32 v{i}, 0")
        for sk in range(NSPLIT):
            b = 64 + sk * 16
            k(f"""
            s_mov_b32 s3, {sk * S * D * 4}
            buffer_load_dwordx4 v[{b}:{b+3}], v5, s[28:31], s3 offen
            buffer_load_dwordx4 v[{b+4}:{b+7}], v5, s[28:31], s3 offen offset:16
            """)
        k("s_mov_b64 exec, s[26:27]")
        for sk in range(NSPLIT):
            b = 64 + sk * 16 + 8
            k(f"""
            s_mov_b32 s3, {sk * S * D * 4}
            buffer_load_dwordx4 v[{b}:{b+3}], v6, s[28:31], s3 offen
            buffer_load_dwordx4 v[{b+4}:{b+7}], v6, s[28:31], s3 offen offset:16
            """)
        k("s_mov_b64 exec, -1")
    k("s_waitcnt vmcnt(0)")
    if mode != 2:
        k(f"""
        v_lshlrev_b32 v52, 1, v0
        """)
        for i in range(4):
            k(f"""
            ds_write_b16 v52, v{40+i} offset:{(2*i)*1168}
            ds_write_b16_d16_hi v52, v{40+i} offset:{(2*i+1)*1168}
            """)
        k("""
        v_cmp_gt_u32 vcc, 64, v0
        s_and_saveexec_b64 s[44:45], vcc
        """)
        for i in range(4):
            k(f"""
            ds_write_b16 v52, v{44+i} offset:{(2*i)*1168+1024}
            ds_write_b16_d16_hi v52, v{44+i} offset:{(2*i+1)*1168+1024}
            """)
        k(f"""
        s_mov_b64 exec, s[44:45]
        v_mul_u32_u24 v52, 1168, v7
        v_lshl_add_u32 v52, v2, 4, v52
        v_mov_b32 v132, 0
        v_mov_b32 v133, 0
        v_mov_b32 v134, 0
        v_mov_b32 v135, 0
        s_waitcnt lgkmcnt(0)
        s_barrier
        ds_read_b128 v[128:131], v52
        s_mov_b64 exec, s[26:27]
        ds_read_b128 v[132:135], v52 offset:1024
        s_mov_b64 exec, -1
        """)
    unpack8(k, 8, 32)
    unpack8(k, 16, 36)
    if mode != 0:
        for i in range(16):
            k(f"""
            v_add_f32 v{64+i}, v{64+i}, v{80+i}
            v_add_f32 v{96+i}, v{96+i}, v{112+i}
            v_add_f32 v{64+i}, v{64+i}, v{96+i}
            """)
        for i in range(0, 16, 2):
            k(f"""
            v_cvt_pk_bf16_f32 v48, v{64+i}, v{64+i+1}
            v_lshlrev_b32 v49, 16, v48
            v_and_b32 v50, s23, v48
            v_add_f32 v49, v49, v{8+i}
            v_add_f32 v50, v50, v{8+i+1}
            v_cvt_pk_bf16_f32 v48, v49, v50
            v_lshlrev_b32 v{8+i}, 16, v48
            v_and_b32 v{8+i+1}, s23, v48
            """)
    if mode == 2:
        pack_store(k, 8, 48, 3, 4, 32)
    else:
        layernorm(k, 8, 64, 80)
        k("s_waitcnt lgkmcnt(0)")
        unpack8(k, 96, 128)
        unpack8(k, 104, 132)
        for i in range(0, 16, 2):
            k(f"""
            v_mul_f32 v49, v{64+i}, v{96+i}
            v_mul_f32 v50, v{64+i+1}, v{96+i+1}
            v_cvt_pk_bf16_f32 v48, v49, v50
            v_lshlrev_b32 v49, 16, v48
            v_and_b32 v50, s23, v48
            v_add_f32 v49, v49, v{8+i}
            v_add_f32 v50, v50, v{8+i+1}
            v_cvt_pk_bf16_f32 v48, v49, v50
            v_lshlrev_b32 v{8+i}, 16, v48
            v_and_b32 v{8+i+1}, s23, v48
            """)
        pack_store(k, 8, 48, 3, 4, 32)
        layernorm(k, 8, 64, 80)
        pack_store(k, 64, 48, 3, 4, 36)
    k.label(done)
    k("s_endpgm")
    return kd(name, 144)


def gen_gemm(k, which):
    g1 = which == 1
    name = f"gemm{which}_kernel"
    WM = 4 if g1 else 2
    WF = 3
    NW = 12
    NMAT = 2 if g1 else 1
    BM = WM * 64
    XROWB = ROWB if g1 else F * 2
    WROWB = F * 2 if g1 else ROWB
    NSTAGE = 18
    XT = 16384
    WT = 32 * 288
    STAGE = XT + 2 * WT
    NBUF = 4
    LDS = NBUF * STAGE
    NXI = XT // 1024
    NWI = 9
    NI = NXI + 2 * NWI
    PER = (NI + NW - 1) // NW
    assert PER == 3
    NFT = 3 * NMAT
    BR = [12, 28]
    AR = 44
    ACC = 68
    T = 44
    kernel_begin(k, name)
    done = f"gemm{which}_done"
    k(f"""
    s_cmp_ge_u32 s2, {0 if 'empty' in EXP else 256}
    s_cbranch_scc1 {done}
    s_load_dwordx2 s[4:5], s[0:1], {KA_WS}
    s_load_dwordx2 s[6:7], s[0:1], {KA_W1 if g1 else KA_W2}
    s_load_dwordx2 s[8:9], s[0:1], {KA_W3}
    s_and_b32 s20, s2, 7                       ; xcd
    s_lshr_b32 s21, s2, 3                      ; idx 0..31
    """)
    if 'stamp' in EXP:
        k("s_memrealtime s[94:95]")
    if g1:
        k("""
        s_and_b32 s22, s21, 7                  ; mt
        s_lshr_b32 s23, s21, 3
        s_lshl_b32 s3, s20, 2
        s_add_u32 s23, s23, s3                 ; ft 0..31
        s_mov_b32 s24, 0
        """)
    else:
        k(f"""
        s_and_b32 s22, s21, 7
        s_and_b32 s3, s20, 1
        s_lshl_b32 s3, s3, 3
        s_add_u32 s22, s22, s3                 ; mt 0..15
        s_lshr_b32 s23, s21, 3                 ; nt 0..3
        s_lshr_b32 s25, s20, 1                 ; split
        s_mul_i32 s24, s25, {F // NSPLIT}      ; k offset
        """)
    k(f"""
    v_lshrrev_b32 v1, 6, v0
    v_and_b32 v2, 63, v0
    s_nop 0
    v_readfirstlane_b32 s26, v1                ; wave
    s_waitcnt lgkmcnt(0)
    """)
    if g1:
        k(f"s_add_u32 s10, s4, {WS_XN}\ns_addc_u32 s11, s5, 0")
        srd(k, 32, 4, S * F * 2, WS_H)
        XBYTES = S * ROWB
    else:
        k(f"s_add_u32 s10, s4, {WS_H}\ns_addc_u32 s11, s5, 0")
        srd(k, 32, 4, NSPLIT * S * D * 4, WS_P)
        XBYTES = S * F * 2
    WBYTES = D * F * 2
    k(f"s_mov_b32 s90, {XBYTES}\ns_mov_b32 s91, {WBYTES}\ns_mov_b32 s92, {(32 if g1 else 64)*WROWB}")
    for j in range(PER):
        k(f"""
        s_add_u32 s27, s26, {NW*j}
        s_min_u32 s27, s27, {NI-1}
        s_and_b32 s3, s27, {15 if g1 else 7}
        s_lshl_b32 s3, s3, 4
        v_lshrrev_b32 v{T}, 2, v2
        v_add_u32 v{T}, s3, v{T}                   ; row = 16i + (l>>2)
        v_lshrrev_b32 v{T+1}, 2, v{T}
        v_sub_u32 v{T+1}, 0, v{T+1}
        v_xor_b32 v{T+1}, v{T+1}, v2
        v_and_b32 v{T+1}, 3, v{T+1}
        v_lshlrev_b32 v{T+1}, 4, v{T+1}
        s_mul_i32 s3, s22, {BM}
        v_add_u32 v{T}, s3, v{T}
        s_mov_b32 s3, {XROWB}
        v_mul_lo_u32 v{T}, v{T}, s3
        v_add_u32 v{T}, v{T}, v{T+1}               ; X voff
        s_lshr_b32 s3, s27, 3
        s_lshl_b32 s3, s3, 6
        s_mul_i32 s3, s3, {0 if g1 else 1}
        v_add_u32 v{T}, s3, v{T}                   ; + k-half*64 (g2)
        s_sub_u32 s28, s27, {NXI}
        s_cmp_ge_i32 s28, {NWI}
        s_cselect_b32 s29, {NWI}, 0
        s_sub_u32 s28, s28, s29
        s_lshl_b32 s3, s28, 6
        v_add_u32 v{T+1}, s3, v2                   ; pos/16 : 0..575
        v_mul_u32_u24 v{T+2}, 3641, v{T+1}
        v_lshrrev_b32 v{T+2}, 16, v{T+2}           ; slot
        v_mul_u32_u24 v{T+3}, 18, v{T+2}
        v_sub_u32 v{T+3}, v{T+1}, v{T+3}           ; chunk 0..17
        v_bfe_u32 v{T+4}, v{T+2}, 3, 1
        v_lshlrev_b32 v{T+4}, 2, v{T+4}
        v_xor_b32 v{T+2}, v{T+2}, v{T+4}           ; k row
        s_mov_b32 s3, {WROWB}
        v_mul_lo_u32 v{T+2}, v{T+2}, s3
        v_lshlrev_b32 v{T+3}, 4, v{T+3}
        v_add_u32 v{T+2}, v{T+2}, v{T+3}
        s_mul_i32 s3, s23, 288
        v_add_u32 v{T+2}, s3, v{T+2}               ; W voff
        s_cmp_ge_u32 s27, {NXI+NWI}
        s_cselect_b32 s3, {0 if g1 else 32*WROWB}, 0
        v_add_u32 v{T+2}, s3, v{T+2}
        s_cselect_b32 s{64+4*j}, s{8 if g1 else 6}, s6
        s_cselect_b32 s{65+4*j}, s{9 if g1 else 7}, s7
        s_lshl_b32 s3, s24, 1
        s_mul_i32 s29, s24, {WROWB}
        s_cmp_lt_u32 s27, {NXI}
        s_cselect_b64 s[36:37], -1, 0
        s_cselect_b32 s{64+4*j}, s10, s{64+4*j}
        s_cselect_b32 s{65+4*j}, s11, s{65+4*j}
        s_cselect_b32 s{66+4*j}, s90, s91
        s_mov_b32 s{67+4*j}, 0x00020000
        s_cselect_b32 s{76+j}, s3, s29
        s_cselect_b32 s{80+j}, {64 if g1 else 0x80}, s92
        s_lshl_b32 s{84+j}, s27, 10
        s_nop 1
        v_cndmask_b32 v{3+j}, v{T+2}, v{T}, s[36:37]
        """)

    def dma(buf):
        if 'nodma' in EXP and dma.n >= 3:
            k("s_nop 0")
            return
        dma.n += 1
        for j in range(PER):
            k(f"""
            s_add_u32 m0, s{84+j}, {buf*STAGE}
            s_nop 0
            buffer_load_dwordx4 v{3+j}, s[{64+4*j}:{67+4*j}], s{76+j} offen lds
            s_add_u32 s{76+j}, s{76+j}, s{80+j}
            """)
    dma.n = 0
    for b in range(NBUF - 1):
        dma(b)
    k(f"""
    s_cmp_ge_u32 s26, {12 if g1 else 6}
    s_cselect_b32 s39, 1, 0                    ; kg
    s_mul_i32 s3, s39, 6
    s_sub_u32 s93, s26, s3
    s_cmp_ge_u32 s93, {WM}
    s_cselect_b32 s28, 1, 0
    s_cmp_ge_u32 s93, {2*WM}
    s_cselect_b32 s28, 2, s28
    s_mul_i32 s3, s28, {WM}
    s_sub_u32 s27, s93, s3                     ; wm = wave % WM
    v_and_b32 v{T}, 15, v2
    v_lshrrev_b32 v{T+1}, 4, v2                ; g
    v_lshrrev_b32 v{T+2}, 2, v{T}
    v_sub_u32 v{T+2}, 0, v{T+2}
    v_xor_b32 v{T+2}, v{T+2}, v{T+1}
    v_and_b32 v{T+2}, 3, v{T+2}
    v_lshlrev_b32 v{T+2}, 4, v{T+2}
    v_lshlrev_b32 v{T+3}, 6, v{T}              ; row*64
    v_add_u32 v{T+2}, v{T+2}, v{T+3}
    s_lshl_b32 s3, s27, 12                     ; wm*64*64
    v_add_u32 v6, s3, v{T+2}
    s_lshl_b32 s3, s39, 13
    v_add_u32 v6, s3, v6
    v_bfe_u32 v{T+2}, v2, 2, 2                 ; r
    v_lshl_add_u32 v{T+2}, v{T+1}, 3, v{T+2}   ; 8g + r
    v_and_b32 v{T+3}, 1, v{T+1}
    v_lshlrev_b32 v{T+3}, 2, v{T+3}            ; 4*(g&1)
    v_add_u32 v{T+4}, v{T+2}, v{T+3}           ; slot h'=0
    v_xor_b32 v{T+3}, 4, v{T+3}
    v_add_u32 v{T+5}, v{T+2}, v{T+3}           ; slot h'=1
    v_mul_u32_u24 v{T+4}, 288, v{T+4}
    v_mul_u32_u24 v{T+5}, 288, v{T+5}
    v_and_b32 v{T+3}, 3, v2
    v_lshlrev_b32 v{T+3}, 3, v{T+3}
    s_mul_i32 s3, s28, 96
    s_add_u32 s3, s3, {XT}
    s_mul_i32 s29, s39, {WT}
    s_add_u32 s3, s3, s29
    v_add3_u32 v7, v{T+4}, v{T+3}, s3
    v_add3_u32 v8, v{T+5}, v{T+3}, s3          ; h'=1
    v_add_u32 v9, {2*STAGE}, v6
    v_add_u32 v10, {2*STAGE}, v7
    v_add_u32 v11, {2*STAGE}, v8
    """)
    for i in range(NFT * 16):
        k(f"v_mov_b32 v{ACC+i}, 0")

    def read_b(buf, par):
        xa = 6 + 3 * (buf // 2)
        for mt in range(4):
            k(f"ds_read_b128 v[{BR[par]+4*mt}:{BR[par]+3+4*mt}], v{xa} offset:{(buf%2)*STAGE + mt*1024}")

    def read_a(buf, ft):
        xa = 6 + 3 * (buf // 2)
        mat, f3 = divmod(ft, 3)
        off = (buf % 2) * STAGE + mat * WT + f3 * 32
        k(f"""
        ds_read_b64_tr_b16 v[{AR+4*ft}:{AR+1+4*ft}], v{xa+1} offset:{off}
        ds_read_b64_tr_b16 v[{AR+2+4*ft}:{AR+3+4*ft}], v{xa+2} offset:{off}
        """)

    def dma1(buf, j):
        if 'nodma' in EXP:
            return
        k(f"""
        s_add_u32 m0, s{84+j}, {buf*STAGE}
        s_nop 0
        buffer_load_dwordx4 v{3+j}, s[{64+4*j}:{67+4*j}], s{76+j} offen lds
        s_add_u32 s{76+j}, s{76+j}, s{80+j}
        """)

    def stage(st, last_dma, has_next, infl):
        b = st % NBUF
        par = st % 2
        if has_next:
            k(f"s_waitcnt vmcnt({infl*PER})\ns_barrier")
        for ft in range(NFT):
            if has_next:
                k(f"s_waitcnt lgkmcnt({2*NFT-2 if ft == 0 else 2*NFT+2})")
            elif ft == 0:
                k("s_waitcnt lgkmcnt(0)")
            for mt in range(4):
                a = ACC + (ft * 4 + mt) * 4
                if 'nomfma' in EXP and not (ft == NFT - 1 and mt == 3):
                    continue
                k(f"v_mfma_f32_16x16x32_bf16 v[{a}:{a+3}], v[{AR+4*ft}:{AR+3+4*ft}], v[{BR[par]+4*mt}:{BR[par]+3+4*mt}], v[{a}:{a+3}]")
            if has_next:
                read_a((b + 1) % NBUF, ft)
                if ft == 0:
                    read_b((b + 1) % NBUF, 1 - par)
                if last_dma is not None:
                    if NFT == 6 and ft in (1, 2, 3):
                        dma1(last_dma, ft - 1)
                    if NFT == 3:
                        dma1(last_dma, ft)

    k(f"s_waitcnt vmcnt({2*PER})\ns_barrier")
    if 'stamp' in EXP:
        k("s_memrealtime s[96:97]")
    read_a(0, 0)
    read_b(0, 0)
    for ft in range(1, NFT):
        read_a(0, ft)
    nloop = (NSTAGE - 3) // NBUF
    if 'noloop' in EXP:
        nloop = 1
        NSTAGE = 6
    k(f"s_mov_b32 s38, {nloop}")
    lp = f"g{which}_loop"
    k.label(lp)
    for b in range(NBUF):
        stage(b, (b + 3) % NBUF, True, 1)
    k(f"s_sub_u32 s38, s38, 1\ns_cmp_lg_u32 s38, 0\ns_cbranch_scc1 {lp}")
    for st in range(nloop * NBUF, NSTAGE):
        has_next = st + 1 < NSTAGE
        infl = 1 if st + 2 < NSTAGE else 0
        stage(st, (st + 3) % NBUF if st + 3 < NSTAGE else None, has_next, infl)
    k("s_nop 7\ns_nop 7")
    if 'stamp' in EXP:
        k("s_memrealtime s[98:99]")
    E = 12
    if g1:
        k(f"""
        v_and_b32 v3, 15, v2
        v_lshrrev_b32 v4, 4, v2
        s_lshl_b32 s3, s22, 8
        v_add_u32 v3, s3, v3
        s_lshl_b32 s3, s27, 6
        v_add_u32 v3, s3, v3
        s_mov_b32 s3, {F*2}
        v_mul_lo_u32 v3, v3, s3
        v_lshlrev_b32 v4, 3, v4
        v_add_u32 v3, v3, v4
        s_mul_i32 s3, s23, 288
        v_add_u32 v3, s3, v3
        s_mul_i32 s3, s28, 96
        v_add_u32 v3, s3, v3
        s_mov_b32 s23, 0xffff0000
        s_mov_b32 s24, 0xbfb8aa3b               ; -log2(e)
        """)
        for f3 in range(3):
            for mt in range(4):
                ga = ACC + (f3 * 4 + mt) * 4
                ua = ACC + ((3 + f3) * 4 + mt) * 4
                o = E + 10 + 2 * (mt % 2)
                for hh in range(2):
                    if 'noepi' in EXP:
                        k(f"v_cvt_pk_bf16_f32 v{o+hh}, v{ga+2*hh}, v{ua+2*hh+1}")
                        continue
                    k(f"""
                    v_cvt_pk_bf16_f32 v{E}, v{ga+2*hh}, v{ga+2*hh+1}
                    v_cvt_pk_bf16_f32 v{E+1}, v{ua+2*hh}, v{ua+2*hh+1}
                    v_lshlrev_b32 v{E+2}, 16, v{E}
                    v_and_b32 v{E+3}, s23, v{E}
                    v_mul_f32 v{E+4}, s24, v{E+2}
                    v_mul_f32 v{E+5}, s24, v{E+3}
                    v_exp_f32 v{E+4}, v{E+4}
                    v_exp_f32 v{E+5}, v{E+5}
                    v_lshlrev_b32 v{E+6}, 16, v{E+1}
                    v_add_f32 v{E+4}, 1.0, v{E+4}
                    v_add_f32 v{E+5}, 1.0, v{E+5}
                    v_rcp_f32 v{E+4}, v{E+4}
                    v_rcp_f32 v{E+5}, v{E+5}
                    v_and_b32 v{E+7}, s23, v{E+1}
                    v_mul_f32 v{E+2}, v{E+2}, v{E+4}
                    v_mul_f32 v{E+3}, v{E+3}, v{E+5}
                    v_cvt_pk_bf16_f32 v{E}, v{E+2}, v{E+3}
                    v_lshlrev_b32 v{E+2}, 16, v{E}
                    v_and_b32 v{E+3}, s23, v{E}
                    v_mul_f32 v{E+2}, v{E+2}, v{E+6}
                    v_mul_f32 v{E+3}, v{E+3}, v{E+7}
                    v_cvt_pk_bf16_f32 v{o+hh}, v{E+2}, v{E+3}
                    """)
                if 'nostore' in EXP and not (f3 == 2 and mt == 3):
                    continue
                k(f"""
                v_add_u32 v4, {mt*16*F*2}, v3
                buffer_store_dwordx2 v[{o}:{o+1}], v4, s[32:35], 0 offen offset:{f3*32}
                """)
    else:
        skipw = k.newlabel("g2r")
        k(f"""
        s_barrier
        v_lshlrev_b32 v5, 4, v2
        s_mul_i32 s3, s93, 12288
        v_add_u32 v5, s3, v5
        s_cmp_eq_u32 s39, 0
        s_cbranch_scc1 {skipw}
        """)
        for x in range(12):
            k(f"ds_write_b128 v5, v[{ACC+4*x}:{ACC+3+4*x}] offset:{x*1024}")
        k(f"s_waitcnt lgkmcnt(0)\ns_barrier\ns_branch {done}")
        k.label(skipw)
        k("s_barrier")
        for x in range(12):
            k(f"ds_read_b128 v[{12+4*x}:{15+4*x}], v5 offset:{x*1024}")
        k("s_waitcnt lgkmcnt(0)")
        for x in range(48):
            k(f"v_add_f32 v{ACC+x}, v{ACC+x}, v{12+x}")
        k(f"""
        v_and_b32 v3, 15, v2
        v_lshrrev_b32 v4, 4, v2
        s_lshl_b32 s3, s22, 7
        v_add_u32 v3, s3, v3
        s_lshl_b32 s3, s27, 6
        v_add_u32 v3, s3, v3
        v_mul_u32_u24 v3, {D*4}, v3
        v_lshlrev_b32 v4, 4, v4
        v_add_u32 v3, v3, v4
        s_mul_i32 s3, s23, 576
        v_add_u32 v3, s3, v3
        s_mul_i32 s3, s28, 192
        v_add_u32 v3, s3, v3
        s_mul_i32 s3, s25, {S*D*4}
        """)
        for f3 in range(3):
            for mt in range(4):
                a = ACC + (f3 * 4 + mt) * 4
                if 'nostore' in EXP and not (f3 == 2 and mt == 3):
                    continue
                k(f"""
                v_add_u32 v4, {mt*16*D*4}, v3
                buffer_store_dwordx4 v[{a}:{a+3}], v4, s[32:35], s3 offen offset:{f3*64}
                """)
    if 'stamp' in EXP:
        k(f"""
        s_waitcnt vmcnt(0)
        s_memrealtime s[100:101]
        s_waitcnt lgkmcnt(0)
        s_cmp_lg_u32 s26, 0
        s_cbranch_scc1 {done}
        s_add_u32 s60, s4, {0x6000000 + which * 0x10000}
        s_addc_u32 s61, s5, 0
        s_mov_b32 s62, 0x10000
        s_mov_b32 s63, 0x00020000
        v_mov_b32 v12, s94
        v_mov_b32 v13, s96
        v_mov_b32 v14, s98
        v_mov_b32 v15, s100
        s_lshl_b32 s3, s2, 4
        v_mov_b32 v16, s3
        s_mov_b64 exec, 1
        buffer_store_dwordx4 v[12:15], v16, s[60:63], 0 offen
        """)
    k.label(done)
    k("s_endpgm")
    return kd(name, ACC + NFT * 16), NW * 64, LDS


def main():
    k = K()
    kds = []
    kds.append(gen_pre(k))
    kds.append(gen_conv(k))
    for m in range(3):
        kds.append(gen_row(k, m))
    kd1, t1, lds1 = gen_gemm(k, 1)
    kd2, t2, lds2 = gen_gemm(k, 2)
    kds += [kd1, kd2]
    launches = [
        ("pre_kernel", 288, 512, PRE_LDS),
        ("conv_kernel", 576, 256, CONV_LDS),
        ("row0_kernel", 256, 512, 9344),
        ("gemm1_kernel", 256, t1, lds1),
        ("gemm2_kernel", 256, t2, lds2),
        ("row1_kernel", 256, 512, 9344),
        ("gemm1_kernel", 256, t1, lds1),
        ("gemm2_kernel", 256, t2, lds2),
        ("row2_kernel", 256, 512, 0),
    ]
    n = int(sys.argv[1]) if len(sys.argv) > 1 else len(launches)
    out = HEADER
    for (nm, g, b, l) in launches[:n]:
        out += f"; @launch kernel={nm} grid=({g},1,1) block=({b},1,1) lds={l}\n"
    out += '.amdgcn_target "amdgcn-amd-amdhsa--gfx950"\n.text\n'
    out += k.text()
    out += '.section .rodata,"a"\n' + "".join(kds)
    open(f"cdna_kernels/{NAME}.s", "w").write(out)


if __name__ == "__main__":
    main()
```
